```python
import torch

def _softmax(x, axis=-1):
    return torch.softmax(x, dim=axis)
def _gelu(x):
    return torch.nn.functional.gelu(x, approximate="tanh")
def _silu(x):
    return torch.nn.functional.silu(x)
def _sigmoid(x):
    return torch.sigmoid(x)
def _layernorm(x, axis=-1, eps=1e-5):
    m = x.mean(dim=axis, keepdim=True)
    v = x.var(dim=axis, keepdim=True, unbiased=False)
    return (x - m) / torch.sqrt(v + eps)
def _scatter_add(tgt, idx, src, axis=0):
    return tgt.clone().index_add_(axis, idx, src)
def _segment_sum(src, seg, n):
    out = torch.zeros((n,) + src.shape[1:], dtype=src.dtype)
    return out.index_add_(0, seg, src)
def _pad(x, pw):
    flat = tuple(v for pair in reversed(pw) for v in pair)
    return torch.nn.functional.pad(x, flat)

kernel_name = 'standalone__gqa_softmax__near_ridge'

def setup_inputs():

    _w = (lambda a: (lambda t: t.to(torch.bfloat16) if t.is_floating_point() else t)(torch.as_tensor(a)))
    B, Hq, Hkv, Sq, Sk, D = 32, 16, 8, 256, 512, 256
    return {
        "q": _w((lambda *s: torch.randn(*s, dtype=torch.bfloat16) * 0.8)(B, Hq, Sq, D)),
        "k": _w((lambda *s: torch.randn(*s, dtype=torch.bfloat16) * 0.8)(B, Hkv, Sk, D)),
        "v": _w((lambda *s: torch.randn(*s, dtype=torch.bfloat16) * 0.05)(B, Hkv, Sk, D)),
    }

def reference(q, k, v):
    B, Hq, Sq, D = q.shape
    Hkv = k.shape[1]
    rep = Hq // Hkv
    k = (lambda x, n, axis: torch.repeat_interleave(x, n, dim=axis))(k, rep, axis=1)
    v = (lambda x, n, axis: torch.repeat_interleave(x, n, dim=axis))(v, rep, axis=1)
    scale = D ** -0.5
    scores = torch.einsum("bhqd,bhkd->bhqk", q, k) * scale
    p = _softmax(scores, axis=-1)
    return torch.einsum("bhqk,bhkd->bhqd", p, v)
```

```python
import sys, struct

OUT = sys.argv[1] if len(sys.argv) > 1 else "standalone__gqa_softmax__near_ridge.s"
NAME = "standalone__gqa_softmax__near_ridge_kernel"

def f32hex(x):
    return "0x%08x" % struct.unpack("<I", struct.pack("<f", x))[0]

C_SCALE = 0.0625 * 1.4426950408889634

V_OFFQ = 1
V_OFFK = 2
V_OFFV = 6
V_ADK = 8
V_ADV = 16
V_MC = 20
V_L = 22
V_MX = 24
V_T = 25
V_KF = 32
V_VF = 48
V_S = 64
V_Q = 128

S_KOFF, S_VOFF, S_LDSW, S_CNT, S_C, S_QOFF, S_WAVE = 24, 25, 26, 27, 28, 29, 30

def Sreg(buf, qb, r=0): return V_S + 32 * buf + 16 * qb + r
def Qreg(qb, s): return V_Q + 64 * qb + 4 * s
def Oreg(qb, db): return 128 * qb + 16 * db
def vr(a, n): return "v[%d:%d]" % (a, a + n - 1)
def ar(a, n): return "a[%d:%d]" % (a, a + n - 1)

class Asm:
    def __init__(self):
        self.lines = []
        self.lds = []
        self.vm = []
    def e(self, s):
        self.lines.append("    " + s)
    def label(self, s):
        self.lines.append(s + ":")
    def ds(self, tag, s):
        self.e(s); self.lds.append(tag)
    def vmem(self, tag, s):
        self.e(s); self.vm.append(tag)
    def wait_ds(self, tag):
        idx = [i for i, t in enumerate(self.lds) if t == tag]
        if not idx: return
        n = len(self.lds) - 1 - idx[-1]
        assert n <= 15
        self.e("s_waitcnt lgkmcnt(%d)" % n)
        self.lds = self.lds[len(self.lds) - n:] if n else []
    def wait_vm(self, tags):
        idx = [i for i, t in enumerate(self.vm) if t in tags]
        if not idx: return
        n = len(self.vm) - 1 - idx[-1]
        assert n <= 63
        self.e("s_waitcnt vmcnt(%d)" % n)
        self.vm = self.vm[len(self.vm) - n:] if n else []

A = Asm()
slow_sites = []

def kread(slot, s):
    e_, f = s // 8, s % 8
    A.ds(("K", s), "ds_read_b128 %s, v%d offset:%d" % (vr(V_KF + 4 * (s % 4), 4), V_ADK + f, slot * 16384 + e_ * 256))

def vread(slot, fidx, t):
    ks, db = fidx // 8, fidx % 8
    e_, f = db // 4, db % 4
    A.ds(("V", fidx), "ds_read_b64_tr_b16 %s, v%d offset:%d" % (
        vr(V_VF + 4 * (fidx % 4) + 2 * t, 2), V_ADV + f, slot * 16384 + ks * 8192 + t * 4096 + e_ * 256))

def dma_k(tile):
    slot = tile % 4
    out = []
    out.append(lambda: A.e("s_add_u32 m0, s%d, 0x%x" % (S_LDSW, slot * 16384)))
    for k in range(4):
        def f(k=k):
            A.vmem(("K", tile), "buffer_load_dwordx4 v%d, s[12:15], s%d offen offset:%d lds" % (V_OFFK + k, S_KOFF, k * 1024))
        out.append(f)
    out.append(lambda: A.e("s_add_u32 s%d, s%d, 0x4000" % (S_KOFF, S_KOFF)))
    return out

def dma_v(tile):
    slot = tile % 4
    out = []
    out.append(lambda: A.e("s_add_u32 m0, s%d, 0x%x" % (S_LDSW, 65536 + slot * 16384)))
    for k in range(4):
        def f(k=k):
            A.vmem(("V", tile), "buffer_load_dwordx4 v%d, s[16:19], s%d offen offset:%d lds" % (V_OFFV + (k % 2), S_VOFF, k * 1024))
        out.append(f)
    out.append(lambda: A.e("s_add_u32 s%d, s%d, 0x4000" % (S_VOFF, S_VOFF)))
    return out

def emit_dma_seq(seq):
    for i, f in enumerate(seq):
        f()
        if i == 0:
            A.e("s_nop 0")

def softmaxB_pairs(buf):
    groups = []
    for ks in range(2):
        for qb in range(2):
            for i in range(4):
                r0 = Sreg(buf, qb, 8 * ks + 2 * i)
                dst = Sreg(buf, qb, 8 * ks + i)
                g1 = ["v_exp_f32 v%d, v%d" % (r0, r0), "v_exp_f32 v%d, v%d" % (r0 + 1, r0 + 1)]
                g2 = ["v_add_f32 v%d, v%d, v%d" % (V_L + qb, V_L + qb, r0),
                      "v_add_f32 v%d, v%d, v%d" % (V_L + qb, V_L + qb, r0 + 1),
                      "v_cvt_pk_bf16_f32 v%d, v%d, v%d" % (dst, r0, r0 + 1)]
                groups.append((g1, g2))
    return groups

def softmaxA_ops(buf):
    ops = []
    xs = []
    for qb in range(2):
        for r in range(16):
            x = Sreg(buf, qb, r)
            ops.append("v_fma_f32 v%d, v%d, s%d, -v%d" % (x, x, S_C, V_MC + qb))
            xs.append(x)
    mx = []
    mx.append((2, "v_max3_f32 v%d, v%d, v%d, v%d" % (V_MX, xs[0], xs[1], xs[2])))
    i = 3
    while i < 32:
        a = xs[i]; b = xs[i + 1] if i + 1 < 32 else xs[i]
        mx.append((min(i + 1, 31), "v_max3_f32 v%d, v%d, v%d, v%d" % (V_MX, V_MX, a, b)))
        i += 2
    res = []
    mi = 0
    for k, o in enumerate(ops):
        res.append(o)
        while mi < len(mx) and mx[mi][0] <= k - 1:
            res.append(mx[mi][1]); mi += 1
    while mi < len(mx):
        res.append(mx[mi][1]); mi += 1
    return res

def phase1(j, do_qk, do_smB, do_vpre=True):
    nb = (j + 1) % 2
    cb = j % 2
    kslot = (j + 1) % 4
    vslot = j % 4
    groups = softmaxB_pairs(cb) if do_smB else []
    if not do_qk:
        for f in range(4):
            vread(vslot, f, 0); vread(vslot, f, 1)
        for g1, g2 in groups:
            for o in g1 + g2: A.e(o)
        return
    for m in range(32):
        s, qb = m // 2, m % 2
        if qb == 0:
            A.wait_ds(("K", s))
        c = "0" if s == 0 else vr(Sreg(nb, qb), 16)
        A.e("v_mfma_f32_32x32x16_bf16 %s, %s, %s, %s" % (vr(Sreg(nb, qb), 16), vr(V_KF + 4 * (s % 4), 4), vr(Qreg(qb, s), 4), c))
        if qb == 1 and s + 4 < 16:
            kread(kslot, s + 4)
        if groups:
            for o in groups[m // 2][m % 2]: A.e(o)
        if do_vpre and m >= 24:
            vread(vslot, (m - 24) // 2, (m - 24) % 2)

def phase2(j, do_pv, do_smA, dma_seq, need_tags, do_kpre, first=False):
    cb = j % 2
    nb = (j + 1) % 2
    vslot = j % 4
    kslot = (j + 2) % 4
    smA = softmaxA_ops(nb) if do_smA else []
    START_A = 6
    BAR_AT = 10
    per = 2
    ai = 0
    di = 0
    for m in range(32):
        f = m // 2; ks = m // 16; db = f % 8; qb = m % 2
        if qb == 0:
            A.wait_ds(("V", f))
        A.e("v_mfma_f32_32x32x16_bf16 %s, %s, %s, %s" % (ar(Oreg(qb, db), 16), vr(V_VF + 4 * (f % 4), 4), vr(Sreg(cb, qb, 8 * ks), 4), ar(Oreg(qb, db), 16)))
        if qb == 1 and f + 4 < 16:
            vread(vslot, f + 4, 0); vread(vslot, f + 4, 1)
        if m >= START_A:
            for _ in range(per):
                if ai < len(smA):
                    A.e(smA[ai]); ai += 1
        if m == BAR_AT:
            A.wait_vm(need_tags)
            A.e("s_barrier")
        if m > BAR_AT and di < len(dma_seq):
            dma_seq[di](); di += 1
        if do_kpre and m >= 28:
            kread(kslot, m - 28)
    while ai < len(smA):
        A.e(smA[ai]); ai += 1
    assert di == len(dma_seq), (di, len(dma_seq))
    if do_smA:
        site = len(slow_sites)
        slow_sites.append(nb)
        A.e("v_cmp_lt_f32 vcc, 0x41000000, v%d" % V_MX)
        A.e("s_cbranch_vccnz L_slow_%d" % site)
        A.label("L_back_%d" % site)

def slow_block(site, buf):
    A.label("L_slow_%d" % site)
    A.e("s_nop 15")
    t, t2, al = V_T, V_T + 1, V_T + 2
    for qb in range(2):
        xs = [Sreg(buf, qb, r) for r in range(16)]
        A.e("v_max3_f32 v%d, v%d, v%d, v%d" % (t, xs[0], xs[1], xs[2]))
        for i in range(3, 15, 2):
            A.e("v_max3_f32 v%d, v%d, v%d, v%d" % (t, t, xs[i], xs[i + 1]))
        A.e("v_max_f32 v%d, v%d, v%d" % (t, t, xs[15]))
        A.e("v_mov_b32 v%d, v%d" % (t2, t))
        A.e("s_nop 1")
        A.e("v_permlane32_swap_b32 v%d, v%d" % (t, t2))
        A.e("s_nop 1")
        A.e("v_max3_f32 v%d, v%d, v%d, 0" % (t, t, t2))
        A.e("v_exp_f32 v%d, -v%d" % (al, t))
        A.e("v_add_f32 v%d, v%d, v%d" % (V_MC + qb, V_MC + qb, t))
        for x in xs:
            A.e("v_sub_f32 v%d, v%d, v%d" % (x, x, t))
        A.e("v_mul_f32 v%d, v%d, v%d" % (V_L + qb, V_L + qb, al))
        for r in range(128):
            tt = V_T + 3 + (r % 4)
            A.e("v_accvgpr_read_b32 v%d, a%d" % (tt, 128 * qb + r))
            A.e("v_mul_f32 v%d, v%d, v%d" % (tt, tt, al))
            A.e("v_accvgpr_write_b32 a%d, v%d" % (128 * qb + r, tt))
    A.e("s_nop 1")
    A.e("s_branch L_back_%d" % site)

hdr = open("standalone__gqa_softmax__near_ridge.s.ref").read().split("\n")
head = []
for l in hdr:
    if l.startswith("; @launch"):
        head.append("; @launch grid=(512,1,1) block=(256,1,1) lds=131072")
    elif l.startswith(";"):
        head.append(l)
    else:
        break

A.e("s_cmp_ge_u32 s2, 512")
A.e("s_cbranch_scc1 L_end")
A.e("s_load_dwordx4 s[4:7], s[0:1], 0")
A.e("s_load_dwordx4 s[36:39], s[0:1], 16")
A.e("s_lshr_b32 s31, s2, 8")
A.e("s_and_b32 s32, s2, 7")
A.e("s_lshr_b32 s33, s2, 3")
A.e("s_and_b32 s33, s33, 31")
A.e("s_and_b32 s34, s33, 1")
A.e("s_lshr_b32 s33, s33, 1")
A.e("s_lshl_b32 s31, s31, 7")
A.e("s_lshl_b32 s32, s32, 4")
A.e("s_add_u32 s31, s31, s32")
A.e("s_add_u32 s31, s31, s33")
A.e("s_lshl_b32 s35, s31, 1")
A.e("s_add_u32 s35, s35, s34")
A.e("v_lshrrev_b32 v25, 6, v0")
A.e("v_and_b32 v0, 63, v0")
A.e("s_nop 0")
A.e("v_readfirstlane_b32 s%d, v25" % S_WAVE)
A.e("s_mov_b32 s%d, %s" % (S_C, f32hex(C_SCALE)))
A.e("s_nop 2")
A.e("s_lshl_b32 s%d, s%d, 12" % (S_LDSW, S_WAVE))
A.e("s_lshl_b32 s%d, s31, 18" % S_KOFF)
A.e("s_add_u32 s%d, s%d, s%d" % (S_KOFF, S_KOFF, S_LDSW))
A.e("s_mov_b32 s%d, s%d" % (S_VOFF, S_KOFF))
A.e("s_lshl_b32 s%d, s35, 17" % S_QOFF)
A.e("s_lshl_b32 s32, s%d, 15" % S_WAVE)
A.e("s_add_u32 s%d, s%d, s32" % (S_QOFF, S_QOFF))
A.e("v_and_b32 v25, 31, v0")
A.e("v_lshrrev_b32 v26, 5, v0")
A.e("v_lshlrev_b32 v27, 9, v25")
A.e("v_lshl_add_u32 v%d, v26, 4, v27" % V_OFFQ)
A.e("v_and_b32 v28, 15, v25")
A.e("v_xor_b32 v28, v28, v26")
for f in range(8):
    A.e("v_xor_b32 v29, %d, v28" % (2 * f))
    A.e("v_lshl_add_u32 v%d, v29, 4, v27" % (V_ADK + f))
A.e("s_and_b32 s32, s%d, 1" % S_WAVE)
A.e("s_lshl_b32 s32, s32, 3")
A.e("v_lshlrev_b32 v27, 9, v26")
A.e("v_xor_b32 v28, v25, v26")
A.e("v_xor_b32 v28, s32, v28")
for k in range(4):
    A.e("v_xor_b32 v29, %d, v28" % (2 * k))
    A.e("v_lshl_add_u32 v%d, v29, 4, v27" % (V_OFFK + k))
A.e("v_lshlrev_b32 v28, 2, v26")
A.e("v_xor_b32 v28, v25, v28")
for k2 in range(2):
    A.e("v_xor_b32 v29, %d, v28" % (8 * k2))
    A.e("v_lshl_add_u32 v%d, v29, 4, v27" % (V_OFFV + k2))
A.e("v_bfe_u32 v27, v0, 2, 2")
A.e("v_lshl_add_u32 v28, v26, 2, v27")
A.e("v_lshlrev_b32 v28, 9, v28")
A.e("v_add_u32 v28, 0x10000, v28")
A.e("v_bfe_u32 v29, v0, 4, 1")
A.e("v_lshl_add_u32 v28, v29, 5, v28")
A.e("v_and_b32 v29, 3, v0")
A.e("v_lshl_add_u32 v28, v29, 3, v28")
for f in range(4):
    A.e("v_xor_b32 v29, %d, v27" % f)
    A.e("v_lshl_add_u32 v%d, v29, 6, v28" % (V_ADV + f))
A.e("s_waitcnt lgkmcnt(0)")
for (d, p) in ((8, 4), (12, 6), (16, 36), (20, 38)):
    A.e("s_mov_b32 s%d, s%d" % (d, p))
    A.e("s_and_b32 s%d, s%d, 0xffff" % (d + 1, p + 1))
    A.e("s_mov_b32 s%d, 0x4000000" % (d + 2))
    A.e("s_mov_b32 s%d, 0x20000" % (d + 3))
emit_dma_seq(dma_k(0))
A.e("s_add_u32 s32, s%d, 0x4000" % S_QOFF)
for qb in range(2):
    for s in range(16):
        A.vmem("Q", "buffer_load_dwordx4 %s, v%d, s[8:11], s%d offen offset:%d" % (vr(Qreg(qb, s), 4), V_OFFQ, S_QOFF if qb == 0 else 32, s * 32))
emit_dma_seq(dma_k(1))
emit_dma_seq(dma_v(0)); emit_dma_seq(dma_k(2))
emit_dma_seq(dma_v(1)); emit_dma_seq(dma_k(3))
for r in range(256):
    A.e("v_accvgpr_write_b32 a%d, 0" % r)
A.e("v_mov_b32 v%d, 0" % V_L)
A.e("v_mov_b32 v%d, 0" % (V_L + 1))
A.wait_vm(["Q", ("K", 0)])
A.e("s_barrier")
for s in range(4):
    kread(0, s)
phase1(-1, True, False, do_vpre=False)
A.wait_vm([("K", 1), ("V", 0)])
A.e("s_barrier")
emit_dma_seq(dma_v(2)); emit_dma_seq(dma_k(4))
A.e("s_nop 7")
t, t2 = V_T, V_T + 1
for qb in range(2):
    xs = [Sreg(0, qb, r) for r in range(16)]
    for x in xs:
        A.e("v_mul_f32 v%d, s%d, v%d" % (x, S_C, x))
    A.e("v_max3_f32 v%d, v%d, v%d, v%d" % (t, xs[0], xs[1], xs[2]))
    for i in range(3, 15, 2):
        A.e("v_max3_f32 v%d, v%d, v%d, v%d" % (t, t, xs[i], xs[i + 1]))
    A.e("v_max_f32 v%d, v%d, v%d" % (t, t, xs[15]))
    A.e("v_mov_b32 v%d, v%d" % (t2, t))
    A.e("s_nop 1")
    A.e("v_permlane32_swap_b32 v%d, v%d" % (t, t2))
    A.e("s_nop 1")
    A.e("v_max_f32 v%d, v%d, v%d" % (V_MC + qb, t, t2))
    for x in xs:
        A.e("v_sub_f32 v%d, v%d, v%d" % (x, x, V_MC + qb))
for s in range(4):
    kread(1, s)

def iteration(j):
    do_qk = j + 1 <= 15
    seq = []
    if j + 3 <= 15: seq += dma_v(j + 3)
    if j + 5 <= 15: seq += dma_k(j + 5)
    phase1(j, do_qk, True)
    need = []
    if j + 2 <= 15: need.append(("K", j + 2))
    if j + 1 <= 15: need.append(("V", j + 1))
    phase2(j, True, do_qk, seq, need, do_kpre=(j + 2 <= 15))

def shift_tags(q, d):
    out = []
    for t in q:
        if isinstance(t, tuple) and t[0] in ("K", "V"):
            out.append((t[0], t[1] + d))
        else:
            out.append(t)
    return out

A.e("s_mov_b32 s%d, 0" % S_CNT)
vm_entry = list(A.vm); lds_entry = list(A.lds)
A.label("L_loop")
for j in range(4):
    iteration(j)
assert A.vm == shift_tags(vm_entry, 4), (A.vm, vm_entry)
assert A.lds == lds_entry, (A.lds, lds_entry)
A.e("s_add_u32 s%d, s%d, 1" % (S_CNT, S_CNT))
A.e("s_cmp_lt_u32 s%d, 2" % S_CNT)
A.e("s_cbranch_scc1 L_loop")
A.vm = shift_tags(A.vm, 4)
for j in range(8, 16):
    iteration(j)

A.e("s_nop 15")
for qb in range(2):
    A.e("v_mov_b32 v%d, v%d" % (V_T, V_L + qb))
    A.e("s_nop 1")
    A.e("v_permlane32_swap_b32 v%d, v%d" % (V_L + qb, V_T))
    A.e("s_nop 1")
    A.e("v_add_f32 v%d, v%d, v%d" % (V_T, V_T, V_L + qb))
    A.e("v_rcp_f32 v%d, v%d" % (V_L + qb, V_T))
A.e("s_nop 0")
A.e("s_add_u32 s32, s%d, 0x4000" % S_QOFF)
cnt = 0
for qb in range(2):
    for db in range(8):
        for i in range(2):
            base = 32 + 16 * (cnt % 4)
            cnt += 1
            for k in range(8):
                A.e("v_accvgpr_read_b32 v%d, a%d" % (base + k, Oreg(qb, db) + 8 * i + k))
            for k in range(8):
                A.e("v_mul_f32 v%d, v%d, v%d" % (base + k, base + k, V_L + qb))
            o = base + 8
            for k in range(4):
                A.e("v_cvt_pk_bf16_f32 v%d, v%d, v%d" % (o + k, base + 2 * k, base + 2 * k + 1))
            A.e("s_nop 1")
            A.e("v_permlane32_swap_b32 v%d, v%d" % (o, o + 2))
            A.e("v_permlane32_swap_b32 v%d, v%d" % (o + 1, o + 3))
            A.e("s_nop 0")
            A.vmem("O", "buffer_store_dwordx4 %s, v%d, s[20:23], s%d offen offset:%d" % (vr(o, 4), V_OFFQ, S_QOFF if qb == 0 else 32, db * 64 + i * 32))
A.label("L_end")
A.e("s_endpgm")
for site, buf in enumerate(slow_sites):
    slow_block(site, buf)

body = "\n".join(A.lines)
text = "\n".join(head) + """
.amdgcn_target "amdgcn-amd-amdhsa--gfx950"
.text
.globl %s
.p2align 8
.type %s,@function
%s:
%s
.section .rodata,"a"
.p2align 6
.amdhsa_kernel %s
  .amdhsa_next_free_vgpr 512
  .amdhsa_next_free_sgpr 64
  .amdhsa_accum_offset 256
  .amdhsa_group_segment_fixed_size 0
  .amdhsa_kernarg_size 48
  .amdhsa_user_sgpr_count 2
  .amdhsa_user_sgpr_kernarg_segment_ptr 1
  .amdhsa_system_sgpr_workgroup_id_x 1
.end_amdhsa_kernel
""" % (NAME, NAME, NAME, body, NAME)
open(OUT, "w").write(text)
print("wrote", OUT, len(A.lines), "lines")
```

```python
import sys, struct

OUT = sys.argv[1] if len(sys.argv) > 1 else "standalone__gqa_softmax__near_ridge.s"
NAME = "standalone__gqa_softmax__near_ridge_kernel"

def f32hex(x):
    return "0x%08x" % struct.unpack("<I", struct.pack("<f", x))[0]

C_SCALE = 0.0625 * 1.4426950408889634

V_OFFQ = 1
V_OFFK = 2
V_OFFV = 6
V_ADK = 8
V_ADV = 16
V_MC = 20
V_L = 22
V_MX = 24
V_T = 25
V_KF = 32
V_VF = 48
V_S = 64
V_Q = 128

S_KOFF, S_VOFF, S_LDSW, S_CNT, S_C, S_QOFF, S_WAVE = 24, 25, 26, 27, 28, 29, 30

def Sreg(buf, qb, r=0): return V_S + 32 * buf + 16 * qb + r
def Qreg(qb, s): return V_Q + 64 * qb + 4 * s
def Oreg(qb, db): return 128 * qb + 16 * db
def vr(a, n): return "v[%d:%d]" % (a, a + n - 1)
def ar(a, n): return "a[%d:%d]" % (a, a + n - 1)

class Asm:
    def __init__(self):
        self.lines = []
        self.lds = []
        self.vm = []
    def e(self, s):
        self.lines.append("    " + s)
    def label(self, s):
        self.lines.append(s + ":")
    def ds(self, tag, s):
        self.e(s); self.lds.append(tag)
    def vmem(self, tag, s):
        self.e(s); self.vm.append(tag)
    def wait_ds(self, tag):
        idx = [i for i, t in enumerate(self.lds) if t == tag]
        if not idx: return
        n = len(self.lds) - 1 - idx[-1]
        assert n <= 15
        self.e("s_waitcnt lgkmcnt(%d)" % n)
        self.lds = self.lds[len(self.lds) - n:] if n else []
    def wait_vm(self, tags):
        idx = [i for i, t in enumerate(self.vm) if t in tags]
        if not idx: return
        n = len(self.vm) - 1 - idx[-1]
        assert n <= 63
        self.e("s_waitcnt vmcnt(%d)" % n)
        self.vm = self.vm[len(self.vm) - n:] if n else []

A = Asm()
slow_sites = []
STAMPS = len(sys.argv) > 2 and sys.argv[2] == "stamps"
nstamp = [0]
import os
NTQ = os.environ.get("NTQ", "nt"); NTKV = os.environ.get("NTKV", "nt"); NTO = os.environ.get("NTO", "")
def stamp(real=False):
    if not STAMPS: return
    if real: return
    i = nstamp[0]; nstamp[0] += 2
    A.e("s_memrealtime s[%d:%d]" % (64 + 2 * i, 65 + 2 * i))
    A.e("s_memtime s[%d:%d]" % (66 + 2 * i, 67 + 2 * i))
    A.e("s_waitcnt lgkmcnt(0)")
    A.lds = []

def kread(slot, s):
    e_, f = s // 8, s % 8
    A.ds(("K", s), "ds_read_b128 %s, v%d offset:%d" % (vr(V_KF + 4 * (s % 4), 4), V_ADK + f, slot * 16384 + e_ * 256))

def vread(slot, fidx, t):
    ks, db = fidx // 8, fidx % 8
    e_, f = db // 4, db % 4
    A.ds(("V", fidx), "ds_read_b64_tr_b16 %s, v%d offset:%d" % (
        vr(V_VF + 4 * (fidx % 4) + 2 * t, 2), V_ADV + f, slot * 16384 + ks * 8192 + t * 4096 + e_ * 256))

def dma_k(tile):
    slot = tile % 4
    out = []
    out.append(lambda: A.e("s_add_u32 m0, s%d, 0x%x" % (S_LDSW, slot * 16384)))
    for k in range(4):
        def f(k=k):
            A.vmem(("K", tile), "buffer_load_dwordx4 v%d, s[12:15], s%d offen offset:%d %s lds" % (V_OFFK + k, S_KOFF, k * 1024, NTKV))
        out.append(f)
    out.append(lambda: A.e("s_add_u32 s%d, s%d, 0x4000" % (S_KOFF, S_KOFF)))
    return out

def dma_v(tile):
    slot = tile % 4
    out = []
    out.append(lambda: A.e("s_add_u32 m0, s%d, 0x%x" % (S_LDSW, 65536 + slot * 16384)))
    for k in range(4):
        def f(k=k):
            A.vmem(("V", tile), "buffer_load_dwordx4 v%d, s[16:19], s%d offen offset:%d %s lds" % (V_OFFV + (k % 2), S_VOFF, k * 1024, NTKV))
        out.append(f)
    out.append(lambda: A.e("s_add_u32 s%d, s%d, 0x4000" % (S_VOFF, S_VOFF)))
    return out

def emit_dma_seq(seq):
    for i, f in enumerate(seq):
        f()
        if i == 0:
            A.e("s_nop 0")

def softmaxB_pairs(buf):
    groups = []
    for ks in range(2):
        for qb in range(2):
            for i in range(4):
                r0 = Sreg(buf, qb, 8 * ks + 2 * i)
                dst = Sreg(buf, qb, 8 * ks + i)
                g1 = ["v_exp_f32 v%d, v%d" % (r0, r0), "v_exp_f32 v%d, v%d" % (r0 + 1, r0 + 1)]
                g2 = ["v_add_f32 v%d, v%d, v%d" % (V_L + qb, V_L + qb, r0),
                      "v_add_f32 v%d, v%d, v%d" % (V_L + qb, V_L + qb, r0 + 1),
                      "v_cvt_pk_bf16_f32 v%d, v%d, v%d" % (dst, r0, r0 + 1)]
                groups.append((g1, g2))
    return groups

def softmaxA_ops(buf):
    ops = []
    xs = []
    for qb in range(2):
        for r in range(16):
            x = Sreg(buf, qb, r)
            ops.append("v_fma_f32 v%d, v%d, s%d, -v%d" % (x, x, S_C, V_MC + qb))
            xs.append(x)
    mx = []
    mx.append((2, "v_max3_f32 v%d, v%d, v%d, v%d" % (V_MX, xs[0], xs[1], xs[2])))
    i = 3
    while i < 32:
        a = xs[i]; b = xs[i + 1] if i + 1 < 32 else xs[i]
        mx.append((min(i + 1, 31), "v_max3_f32 v%d, v%d, v%d, v%d" % (V_MX, V_MX, a, b)))
        i += 2
    res = []
    mi = 0
    for k, o in enumerate(ops):
        res.append(o)
        while mi < len(mx) and mx[mi][0] <= k - 1:
            res.append(mx[mi][1]); mi += 1
    while mi < len(mx):
        res.append(mx[mi][1]); mi += 1
    return res

def phase1(j, do_qk, do_smB, do_vpre=True):
    nb = (j + 1) % 2
    cb = j % 2
    kslot = (j + 1) % 4
    vslot = j % 4
    groups = softmaxB_pairs(cb) if do_smB else []
    if not do_qk:
        for f in range(4):
            vread(vslot, f, 0); vread(vslot, f, 1)
        for g1, g2 in groups:
            for o in g1 + g2: A.e(o)
        return
    for m in range(32):
        s, qb = m // 2, m % 2
        if qb == 0:
            A.wait_ds(("K", s))
        c = "0" if s == 0 else vr(Sreg(nb, qb), 16)
        A.e("v_mfma_f32_32x32x16_bf16 %s, %s, %s, %s" % (vr(Sreg(nb, qb), 16), vr(V_KF + 4 * (s % 4), 4), vr(Qreg(qb, s), 4), c))
        if qb == 1 and s + 4 < 16:
            kread(kslot, s + 4)
        if groups:
            for o in groups[m // 2][m % 2]: A.e(o)
        if do_vpre and m >= 24:
            vread(vslot, (m - 24) // 2, (m - 24) % 2)

def phase2(j, do_pv, do_smA, dma_seq, need_tags, do_kpre, first=False):
    cb = j % 2
    nb = (j + 1) % 2
    vslot = j % 4
    kslot = (j + 2) % 4
    smA = softmaxA_ops(nb) if do_smA else []
    START_A = 6
    BAR_AT = 10
    per = 2
    ai = 0
    di = 0
    for m in range(32):
        f = m // 2; ks = m // 16; db = f % 8; qb = m % 2
        if qb == 0:
            A.wait_ds(("V", f))
        A.e("v_mfma_f32_32x32x16_bf16 %s, %s, %s, %s" % (ar(Oreg(qb, db), 16), vr(V_VF + 4 * (f % 4), 4), vr(Sreg(cb, qb, 8 * ks), 4), ar(Oreg(qb, db), 16)))
        if qb == 1 and f + 4 < 16:
            vread(vslot, f + 4, 0); vread(vslot, f + 4, 1)
        if m >= START_A:
            for _ in range(per):
                if ai < len(smA):
                    A.e(smA[ai]); ai += 1
        if m == BAR_AT:
            A.wait_vm(need_tags)
            A.e("s_barrier")
        if m > BAR_AT and di < len(dma_seq):
            dma_seq[di](); di += 1
        if do_kpre and m >= 28:
            kread(kslot, m - 28)
    while ai < len(smA):
        A.e(smA[ai]); ai += 1
    assert di == len(dma_seq), (di, len(dma_seq))
    if do_smA:
        site = len(slow_sites)
        slow_sites.append(nb)
        A.e("v_cmp_lt_f32 vcc, 0x41000000, v%d" % V_MX)
        A.e("s_cbranch_vccnz L_slow_%d" % site)
        A.label("L_back_%d" % site)

def slow_block(site, buf):
    A.label("L_slow_%d" % site)
    A.e("s_nop 15")
    t, t2, al = V_T, V_T + 1, V_T + 2
    for qb in range(2):
        xs = [Sreg(buf, qb, r) for r in range(16)]
        A.e("v_max3_f32 v%d, v%d, v%d, v%d" % (t, xs[0], xs[1], xs[2]))
        for i in range(3, 15, 2):
            A.e("v_max3_f32 v%d, v%d, v%d, v%d" % (t, t, xs[i], xs[i + 1]))
        A.e("v_max_f32 v%d, v%d, v%d" % (t, t, xs[15]))
        A.e("v_mov_b32 v%d, v%d" % (t2, t))
        A.e("s_nop 1")
        A.e("v_permlane32_swap_b32 v%d, v%d" % (t, t2))
        A.e("s_nop 1")
        A.e("v_max3_f32 v%d, v%d, v%d, 0" % (t, t, t2))
        A.e("v_exp_f32 v%d, -v%d" % (al, t))
        A.e("v_add_f32 v%d, v%d, v%d" % (V_MC + qb, V_MC + qb, t))
        for x in xs:
            A.e("v_sub_f32 v%d, v%d, v%d" % (x, x, t))
        A.e("v_mul_f32 v%d, v%d, v%d" % (V_L + qb, V_L + qb, al))
        for r in range(128):
            tt = V_T + 3 + (r % 4)
            A.e("v_accvgpr_read_b32 v%d, a%d" % (tt, 128 * qb + r))
            A.e("v_mul_f32 v%d, v%d, v%d" % (tt, tt, al))
            A.e("v_accvgpr_write_b32 a%d, v%d" % (128 * qb + r, tt))
    A.e("s_nop 1")
    A.e("s_branch L_back_%d" % site)

hdr = open("standalone__gqa_softmax__near_ridge.s.ref").read().split("\n")
head = []
for l in hdr:
    if l.startswith("; @launch"):
        head.append("; @launch grid=(512,1,1) block=(256,1,1) lds=131072")
    elif l.startswith(";"):
        head.append(l)
    else:
        break

A.e("s_cmp_ge_u32 s2, 512")
A.e("s_cbranch_scc1 L_end")
A.e("s_load_dwordx4 s[4:7], s[0:1], 0")
A.e("s_load_dwordx4 s[36:39], s[0:1], 16")
if STAMPS:
    A.e("s_load_dwordx2 s[60:61], s[0:1], 40")
stamp(True)
stamp()
A.e("s_lshr_b32 s31, s2, 8")
A.e("s_and_b32 s32, s2, 7")
A.e("s_lshr_b32 s33, s2, 3")
A.e("s_and_b32 s33, s33, 31")
A.e("s_and_b32 s34, s33, 1")
A.e("s_lshr_b32 s33, s33, 1")
A.e("s_lshl_b32 s31, s31, 7")
A.e("s_lshl_b32 s32, s32, 4")
A.e("s_add_u32 s31, s31, s32")
A.e("s_add_u32 s31, s31, s33")
A.e("s_lshl_b32 s35, s31, 1")
A.e("s_add_u32 s35, s35, s34")
A.e("v_lshrrev_b32 v25, 6, v0")
A.e("v_and_b32 v0, 63, v0")
A.e("s_nop 0")
A.e("v_readfirstlane_b32 s%d, v25" % S_WAVE)
A.e("s_mov_b32 s%d, %s" % (S_C, f32hex(C_SCALE)))
A.e("s_nop 2")
A.e("s_lshl_b32 s%d, s%d, 12" % (S_LDSW, S_WAVE))
A.e("s_lshl_b32 s%d, s31, 18" % S_KOFF)
A.e("s_add_u32 s%d, s%d, s%d" % (S_KOFF, S_KOFF, S_LDSW))
A.e("s_mov_b32 s%d, s%d" % (S_VOFF, S_KOFF))
A.e("s_lshl_b32 s%d, s35, 17" % S_QOFF)
A.e("s_lshl_b32 s32, s%d, 15" % S_WAVE)
A.e("s_add_u32 s%d, s%d, s32" % (S_QOFF, S_QOFF))
A.e("v_and_b32 v25, 31, v0")
A.e("v_lshrrev_b32 v26, 5, v0")
A.e("v_lshlrev_b32 v27, 9, v25")
A.e("v_lshl_add_u32 v%d, v26, 4, v27" % V_OFFQ)
A.e("v_and_b32 v28, 15, v25")
A.e("v_xor_b32 v28, v28, v26")
for f in range(8):
    A.e("v_xor_b32 v29, %d, v28" % (2 * f))
    A.e("v_lshl_add_u32 v%d, v29, 4, v27" % (V_ADK + f))
A.e("s_and_b32 s32, s%d, 1" % S_WAVE)
A.e("s_lshl_b32 s32, s32, 3")
A.e("v_lshlrev_b32 v27, 9, v26")
A.e("v_xor_b32 v28, v25, v26")
A.e("v_xor_b32 v28, s32, v28")
for k in range(4):
    A.e("v_xor_b32 v29, %d, v28" % (2 * k))
    A.e("v_lshl_add_u32 v%d, v29, 4, v27" % (V_OFFK + k))
A.e("v_lshlrev_b32 v28, 2, v26")
A.e("v_xor_b32 v28, v25, v28")
for k2 in range(2):
    A.e("v_xor_b32 v29, %d, v28" % (8 * k2))
    A.e("v_lshl_add_u32 v%d, v29, 4, v27" % (V_OFFV + k2))
A.e("v_bfe_u32 v27, v0, 2, 2")
A.e("v_lshl_add_u32 v28, v26, 2, v27")
A.e("v_lshlrev_b32 v28, 9, v28")
A.e("v_add_u32 v28, 0x10000, v28")
A.e("v_bfe_u32 v29, v0, 4, 1")
A.e("v_lshl_add_u32 v28, v29, 5, v28")
A.e("v_and_b32 v29, 3, v0")
A.e("v_lshl_add_u32 v28, v29, 3, v28")
for f in range(4):
    A.e("v_xor_b32 v29, %d, v27" % f)
    A.e("v_lshl_add_u32 v%d, v29, 6, v28" % (V_ADV + f))
A.e("s_waitcnt lgkmcnt(0)")
for (d, p) in ((8, 4), (12, 6), (16, 36), (20, 38)):
    A.e("s_mov_b32 s%d, s%d" % (d, p))
    A.e("s_and_b32 s%d, s%d, 0xffff" % (d + 1, p + 1))
    A.e("s_mov_b32 s%d, 0x4000000" % (d + 2))
    A.e("s_mov_b32 s%d, 0x20000" % (d + 3))
emit_dma_seq(dma_k(0))
A.e("s_add_u32 s32, s%d, 0x4000" % S_QOFF)
for qb in range(2):
    for s in range(16):
        A.vmem("Q", "buffer_load_dwordx4 %s, v%d, s[8:11], s%d offen offset:%d %s" % (vr(Qreg(qb, s), 4), V_OFFQ, S_QOFF if qb == 0 else 32, s * 32, NTQ))
emit_dma_seq(dma_k(1))
emit_dma_seq(dma_v(0)); emit_dma_seq(dma_k(2))
emit_dma_seq(dma_v(1)); emit_dma_seq(dma_k(3))
for r in range(256):
    A.e("v_accvgpr_write_b32 a%d, 0" % r)
A.e("v_mov_b32 v%d, 0" % V_L)
A.e("v_mov_b32 v%d, 0" % (V_L + 1))
A.wait_vm(["Q", ("K", 0)])
A.e("s_barrier")
stamp()
for s in range(4):
    kread(0, s)
phase1(-1, True, False, do_vpre=False)
A.wait_vm([("K", 1), ("V", 0)])
A.e("s_barrier")
emit_dma_seq(dma_v(2)); emit_dma_seq(dma_k(4))
A.e("s_nop 7")
t, t2 = V_T, V_T + 1
for qb in range(2):
    xs = [Sreg(0, qb, r) for r in range(16)]
    for x in xs:
        A.e("v_mul_f32 v%d, s%d, v%d" % (x, S_C, x))
    A.e("v_max3_f32 v%d, v%d, v%d, v%d" % (t, xs[0], xs[1], xs[2]))
    for i in range(3, 15, 2):
        A.e("v_max3_f32 v%d, v%d, v%d, v%d" % (t, t, xs[i], xs[i + 1]))
    A.e("v_max_f32 v%d, v%d, v%d" % (t, t, xs[15]))
    A.e("v_mov_b32 v%d, v%d" % (t2, t))
    A.e("s_nop 1")
    A.e("v_permlane32_swap_b32 v%d, v%d" % (t, t2))
    A.e("s_nop 1")
    A.e("v_max_f32 v%d, v%d, v%d" % (V_MC + qb, t, t2))
    for x in xs:
        A.e("v_sub_f32 v%d, v%d, v%d" % (x, x, V_MC + qb))
for s in range(4):
    kread(1, s)

def iteration(j):
    do_qk = j + 1 <= 15
    seq = []
    if j + 3 <= 15: seq += dma_v(j + 3)
    if j + 5 <= 15: seq += dma_k(j + 5)
    phase1(j, do_qk, True)
    need = []
    if j + 2 <= 15: need.append(("K", j + 2))
    if j + 1 <= 15: need.append(("V", j + 1))
    phase2(j, True, do_qk, seq, need, do_kpre=(j + 2 <= 15))

def shift_tags(q, d):
    out = []
    for t in q:
        if isinstance(t, tuple) and t[0] in ("K", "V"):
            out.append((t[0], t[1] + d))
        else:
            out.append(t)
    return out

A.e("s_mov_b32 s%d, 0" % S_CNT)
if STAMPS:
    lsave = list(A.lds); stamp(); A.lds = lsave
vm_entry = list(A.vm); lds_entry = list(A.lds)
A.label("L_loop")
for j in range(4):
    iteration(j)
assert A.vm == shift_tags(vm_entry, 4), (A.vm, vm_entry)
assert A.lds == lds_entry, (A.lds, lds_entry)
A.e("s_add_u32 s%d, s%d, 1" % (S_CNT, S_CNT))
A.e("s_cmp_lt_u32 s%d, 2" % S_CNT)
A.e("s_cbranch_scc1 L_loop")
A.vm = shift_tags(A.vm, 4)
for j in range(8, 16):
    iteration(j)

A.e("s_nop 15")
stamp()
for qb in range(2):
    A.e("v_mov_b32 v%d, v%d" % (V_T, V_L + qb))
    A.e("s_nop 1")
    A.e("v_permlane32_swap_b32 v%d, v%d" % (V_L + qb, V_T))
    A.e("s_nop 1")
    A.e("v_add_f32 v%d, v%d, v%d" % (V_T, V_T, V_L + qb))
    A.e("v_rcp_f32 v%d, v%d" % (V_L + qb, V_T))
A.e("s_nop 0")
A.e("s_add_u32 s32, s%d, 0x4000" % S_QOFF)
cnt = 0
for qb in range(2):
    for db in range(8):
        for i in range(2):
            base = 32 + 16 * (cnt % 4)
            cnt += 1
            for k in range(8):
                A.e("v_accvgpr_read_b32 v%d, a%d" % (base + k, Oreg(qb, db) + 8 * i + k))
            for k in range(8):
                A.e("v_mul_f32 v%d, v%d, v%d" % (base + k, base + k, V_L + qb))
            o = base + 8
            for k in range(4):
                A.e("v_cvt_pk_bf16_f32 v%d, v%d, v%d" % (o + k, base + 2 * k, base + 2 * k + 1))
            A.e("s_nop 1")
            A.e("v_permlane32_swap_b32 v%d, v%d" % (o, o + 2))
            A.e("v_permlane32_swap_b32 v%d, v%d" % (o + 1, o + 3))
            A.e("s_nop 0")
            A.vmem("O", "buffer_store_dwordx4 %s, v%d, s[20:23], s%d offen offset:%d %s" % (vr(o, 4), V_OFFQ, S_QOFF if qb == 0 else 32, db * 64 + i * 32, NTO))
stamp()
if STAMPS:
    A.e("s_waitcnt vmcnt(0)")
stamp()
stamp(True)
if STAMPS:
    n = nstamp[0]
    A.e("s_mov_b32 s8, s60")
    A.e("s_and_b32 s9, s61, 0xffff")
    A.e("s_mov_b32 s10, 0x1000000")
    A.e("s_mov_b32 s11, 0x20000")
    A.e("s_lshl_b32 s32, s2, 2")
    A.e("s_add_u32 s32, s32, s%d" % S_WAVE)
    A.e("s_mul_i32 s32, s32, %d" % (n * 8))
    A.e("v_mov_b32 v1, 0")
    for i in range(n):
        A.e("v_mov_b32 v2, s%d" % (64 + 2 * i))
        A.e("v_mov_b32 v3, s%d" % (65 + 2 * i))
        A.e("buffer_store_dwordx2 v[2:3], v1, s[8:11], s32 offen offset:%d" % (8 * i))
        A.e("s_nop 1")
    print("nstamps", n)
A.label("L_end")
A.e("s_endpgm")
for site, buf in enumerate(slow_sites):
    slow_block(site, buf)

body = "\n".join(A.lines)
text = "\n".join(head) + """
.amdgcn_target "amdgcn-amd-amdhsa--gfx950"
.text
.globl %s
.p2align 8
.type %s,@function
%s:
%s
.section .rodata,"a"
.p2align 6
.amdhsa_kernel %s
  .amdhsa_next_free_vgpr 512
  .amdhsa_next_free_sgpr 100
  .amdhsa_accum_offset 256
  .amdhsa_group_segment_fixed_size 0
  .amdhsa_kernarg_size 48
  .amdhsa_user_sgpr_count 2
  .amdhsa_user_sgpr_kernarg_segment_ptr 1
  .amdhsa_system_sgpr_workgroup_id_x 1
.end_amdhsa_kernel
""" % (NAME, NAME, NAME, body, NAME)
open(OUT, "w").write(text)
print("wrote", OUT, len(A.lines), "lines")
```

```python
import sys, struct, os

OUT = sys.argv[1] if len(sys.argv) > 1 else "standalone__gqa_softmax__near_ridge.s"
STAMPS = len(sys.argv) > 2 and sys.argv[2] == "stamps"
NAME = "standalone__gqa_softmax__near_ridge_kernel"
NT = os.environ.get("NT", "nt")
NTO = os.environ.get("NTO", "")

def f32hex(x):
    return "0x%08x" % struct.unpack("<I", struct.pack("<f", x))[0]

C_SCALE = 0.0625 * 1.4426950408889634

V_LANE = 0
V_OST = 1
V_OFFK = 2
V_OFFV = 6
V_ADK = 8
V_ADV = 16
V_MC = 20
V_L = 22
V_MX = 24
V_T = 25
V_KF = 32
V_VF = 48
V_S = 64
V_Q = 128

S_KOFF, S_VOFF, S_LDSW, S_CNT, S_C, S_QOFF, S_WAVE, S_QN, S_T0, S_T1, S_STG = 24, 25, 26, 27, 28, 29, 30, 31, 32, 33, 34
S_RET = 40
STG = 131072

def Sreg(buf, qb, r=0): return V_S + 32 * buf + 16 * qb + r
def Qreg(qb, s): return V_Q + 64 * qb + 4 * s
def Oreg(qb, db): return 128 * qb + 16 * db
def vr(a, n): return "v[%d:%d]" % (a, a + n - 1)
def ar(a, n): return "a[%d:%d]" % (a, a + n - 1)

class Asm:
    def __init__(self):
        self.lines = []
        self.lds = []
        self.vm = []
    def e(self, s):
        self.lines.append("    " + s)
    def label(self, s):
        self.lines.append(s + ":")
    def ds(self, tag, s):
        self.e(s); self.lds.append(tag)
    def vmem(self, tag, s):
        self.e(s); self.vm.append(tag)
    def wait_ds(self, tags, force=False):
        if not isinstance(tags, list): tags = [tags]
        idx = [i for i, t in enumerate(self.lds) if t in tags]
        if not idx:
            if not force: return
            n = min(len(self.lds), 15)
        else:
            n = len(self.lds) - 1 - idx[-1]
        n = min(n, 15)
        self.e("s_waitcnt lgkmcnt(%d)" % n)
        self.lds = self.lds[len(self.lds) - n:] if n else []
    def wait_vm(self, tags, force=True):
        idx = [i for i, t in enumerate(self.vm) if t in tags]
        if not idx:
            if not force: return
            n = len(self.vm)
        else:
            n = len(self.vm) - 1 - idx[-1]
        n = min(n, 63)
        self.e("s_waitcnt vmcnt(%d)" % n)
        self.vm = self.vm[len(self.vm) - n:] if n else []

A = Asm()
nstamp = [0]
def stamp():
    if not STAMPS: return
    i = nstamp[0]; nstamp[0] += 2
    A.e("s_memrealtime s[%d:%d]" % (50 + 2 * i, 51 + 2 * i))
    A.e("s_memtime s[%d:%d]" % (52 + 2 * i, 53 + 2 * i))
    A.e("s_waitcnt lgkmcnt(0)")
    A.lds = []

site_cnt = [0]

def kslot(T):
    u, t = T // 16, T % 16
    return (t + 2 * u) % 4
def vslot(T):
    return T % 4

def kread(T, s):
    e_, f = s // 8, s % 8
    A.ds(("K", s), "ds_read_b128 %s, v%d offset:%d" % (vr(V_KF + 4 * (s % 4), 4), V_ADK + f, kslot(T) * 16384 + e_ * 256))

def vread(T, fidx, t):
    ks, db = fidx // 8, fidx % 8
    e_, f = db // 4, db % 4
    A.ds(("V", fidx), "ds_read_b64_tr_b16 %s, v%d offset:%d" % (
        vr(V_VF + 4 * (fidx % 4) + 2 * t, 2), V_ADV + f, vslot(T) * 16384 + ks * 8192 + t * 4096 + e_ * 256))

def dma_k(T):
    out = []
    if T == 16:
        out.append(lambda: A.e("s_add_u32 s%d, s%d, 0x%x" % (S_KOFF, S_KOFF, 127 * 262144)))
    out.append(lambda: A.e("s_add_u32 m0, s%d, 0x%x" % (S_LDSW, kslot(T) * 16384)))
    for k in range(4):
        def f(k=k):
            A.vmem(("K", T), "buffer_load_dwordx4 v%d, s[12:15], s%d offen offset:%d %s lds" % (V_OFFK + k, S_KOFF, k * 1024, NT))
        out.append(f)
    out.append(lambda: A.e("s_add_u32 s%d, s%d, 0x4000" % (S_KOFF, S_KOFF)))
    return out

def dma_v(T):
    out = []
    if T == 16:
        out.append(lambda: A.e("s_add_u32 s%d, s%d, 0x%x" % (S_VOFF, S_VOFF, 127 * 262144)))
    out.append(lambda: A.e("s_add_u32 m0, s%d, 0x%x" % (S_LDSW, 65536 + vslot(T) * 16384)))
    for k in range(4):
        def f(k=k):
            A.vmem(("V", T), "buffer_load_dwordx4 v%d, s[16:19], s%d offen offset:%d %s lds" % (V_OFFV + (k % 2), S_VOFF, k * 1024, NT))
        out.append(f)
    out.append(lambda: A.e("s_add_u32 s%d, s%d, 0x4000" % (S_VOFF, S_VOFF)))
    return out

def dma_q(tag, sq, qb, p, dest):
    out = []
    def pre():
        A.e("s_add_u32 s%d, s%d, 0x%x" % (S_T0, sq, qb * 16384 + p * 4096))
        if dest[0] == 'stg':
            A.e("s_add_u32 m0, s%d, 0x%x" % (S_STG, dest[1]))
        else:
            A.e("s_add_u32 m0, s%d, 0x%x" % (S_LDSW, dest[1]))
    out.append(pre)
    for k in range(4):
        def f(k=k):
            A.e("v_xor_b32 v%d, s%d, v%d" % (V_T + 6, 35 + (p % 2), V_OFFK + k))
            A.vmem(tag, "buffer_load_dwordx4 v%d, s[8:11], s%d offen offset:%d %s lds" % (V_T + 6, S_T0, k * 1024, NT))
        out.append(f)
    return out

def emit_seq(seq):
    for f in seq:
        f()
        A.e("s_nop 0")

def q_delta(bases):
    d = V_T + 5
    t = V_T + 4
    A.e("v_bfe_u32 v%d, v%d, 3, 2" % (t, V_LANE))
    for p in range(4):
        sg, c = bases[p]
        A.e("s_add_u32 s%d, s%d, 0x%x" % (S_T0, sg, (c - p * 4096) & 0xffffffff))
        if p == 0:
            A.e("v_mov_b32 v%d, s%d" % (d, S_T0))
        else:
            A.e("v_mov_b32 v%d, s%d" % (V_T + 3, S_T0))
            A.e("v_cmp_eq_u32 vcc, %d, v%d" % (p, t))
            A.e("s_nop 1")
            A.e("v_cndmask_b32 v%d, v%d, v%d, vcc" % (d, d, V_T + 3))

def q_reads(qb):
    out = []
    for s in range(16):
        def f(s=s):
            e_, ff = s // 8, s % 8
            A.e("v_add_u32 v%d, v%d, v%d" % (V_T + 4, V_ADK + ff, V_T + 5))
            A.ds("Q", "ds_read_b128 %s, v%d offset:%d" % (vr(Qreg(qb, s), 4), V_T + 4, e_ * 256))
        out.append(f)
    return out

def softmaxB_pairs(buf):
    groups = []
    for ks in range(2):
        for qb in range(2):
            for i in range(4):
                r0 = Sreg(buf, qb, 8 * ks + 2 * i)
                dst = Sreg(buf, qb, 8 * ks + i)
                g1 = ["v_exp_f32 v%d, v%d" % (r0, r0), "v_exp_f32 v%d, v%d" % (r0 + 1, r0 + 1)]
                g2 = ["v_add_f32 v%d, v%d, v%d" % (V_L + qb, V_L + qb, r0),
                      "v_add_f32 v%d, v%d, v%d" % (V_L + qb, V_L + qb, r0 + 1),
                      "v_cvt_pk_bf16_f32 v%d, v%d, v%d" % (dst, r0, r0 + 1)]
                groups.append((g1, g2))
    return groups

def softmaxA_ops(buf):
    ops = []
    xs = []
    for qb in range(2):
        for r in range(16):
            x = Sreg(buf, qb, r)
            ops.append("v_fma_f32 v%d, v%d, s%d, -v%d" % (x, x, S_C, V_MC + qb))
            xs.append(x)
    mx = []
    mx.append((2, "v_max3_f32 v%d, v%d, v%d, v%d" % (V_MX, xs[0], xs[1], xs[2])))
    i = 3
    while i < 32:
        a = xs[i]; b = xs[i + 1] if i + 1 < 32 else xs[i]
        mx.append((min(i + 1, 31), "v_max3_f32 v%d, v%d, v%d, v%d" % (V_MX, V_MX, a, b)))
        i += 2
    res = []
    mi = 0
    for k, o in enumerate(ops):
        res.append(o)
        while mi < len(mx) and mx[mi][0] <= k - 1:
            res.append(mx[mi][1]); mi += 1
    while mi < len(mx):
        res.append(mx[mi][1]); mi += 1
    return res

def phase1(T, do_qk, do_smB, do_vpre=True):
    nb = (T + 1) % 2
    cb = T % 2
    groups = softmaxB_pairs(cb) if do_smB else []
    if not do_qk:
        for f in range(4):
            vread(T, f, 0); vread(T, f, 1)
        for g1, g2 in groups:
            for o in g1 + g2: A.e(o)
        return
    for m in range(32):
        s, qb = m // 2, m % 2
        if qb == 0:
            A.wait_ds(("K", s), force=True)
        c = "0" if s == 0 else vr(Sreg(nb, qb), 16)
        A.e("v_mfma_f32_32x32x16_bf16 %s, %s, %s, %s" % (vr(Sreg(nb, qb), 16), vr(V_KF + 4 * (s % 4), 4), vr(Qreg(qb, s), 4), c))
        if qb == 1 and s + 4 < 16:
            kread(T + 1, s + 4)
        if groups:
            for o in groups[m // 2][m % 2]: A.e(o)
        if do_vpre and m >= 24:
            vread(T, (m - 24) // 2, (m - 24) % 2)

def phase2(T, do_smA, pre_seq, post_seq, need_tags, do_kpre, first=False):
    cb = T % 2
    nb = (T + 1) % 2
    smA = softmaxA_ops(nb) if do_smA else []
    START_A = 6
    BAR_AT = 10
    ai = 0
    pi = 0
    di = 0
    npre = -(-len(pre_seq) // (BAR_AT + 1))
    npost = -(-len(post_seq) // (31 - BAR_AT))
    for m in range(32):
        f = m // 2; ks = m // 16; db = f % 8; qb = m % 2
        if qb == 0:
            A.wait_ds(("V", f), force=True)
        c = "0" if (first and ks == 0) else ar(Oreg(qb, db), 16)
        A.e("v_mfma_f32_32x32x16_bf16 %s, %s, %s, %s" % (ar(Oreg(qb, db), 16), vr(V_VF + 4 * (f % 4), 4), vr(Sreg(cb, qb, 8 * ks), 4), c))
        if qb == 1 and f + 4 < 16:
            vread(T, f + 4, 0); vread(T, f + 4, 1)
        if m >= START_A:
            for _ in range(2):
                if ai < len(smA):
                    A.e(smA[ai]); ai += 1
        if m <= BAR_AT:
            for _ in range(npre):
                if pi < len(pre_seq):
                    pre_seq[pi](); pi += 1
        if m == BAR_AT:
            A.wait_vm(need_tags)
            A.e("s_barrier")
        if m > BAR_AT:
            for z in range(npost):
                if di < len(post_seq):
                    if z > 0: A.e("s_nop 0")
                    post_seq[di](); di += 1
        if do_kpre and m >= 28:
            kread(T + 2, m - 28)
    while ai < len(smA):
        A.e(smA[ai]); ai += 1
    assert di == len(post_seq) and pi == len(pre_seq)
    if do_smA:
        site = site_cnt[0]; site_cnt[0] += 1
        A.e("v_cmp_lt_f32 vcc, 0x41000000, v%d" % V_MX)
        A.e("s_cbranch_vccz L_back_%d" % site)
        A.e("s_call_b64 s[%d:%d], L_slow_%d" % (S_RET, S_RET + 1, nb))
        A.label("L_back_%d" % site)

def slow_block(buf):
    A.label("L_slow_%d" % buf)
    A.e("s_nop 15")
    t, t2, al = V_T, V_T + 1, V_T + 2
    for qb in range(2):
        xs = [Sreg(buf, qb, r) for r in range(16)]
        A.e("v_max3_f32 v%d, v%d, v%d, v%d" % (t, xs[0], xs[1], xs[2]))
        for i in range(3, 15, 2):
            A.e("v_max3_f32 v%d, v%d, v%d, v%d" % (t, t, xs[i], xs[i + 1]))
        A.e("v_max_f32 v%d, v%d, v%d" % (t, t, xs[15]))
        A.e("v_mov_b32 v%d, v%d" % (t2, t))
        A.e("s_nop 1")
        A.e("v_permlane32_swap_b32 v%d, v%d" % (t, t2))
        A.e("s_nop 1")
        A.e("v_max3_f32 v%d, v%d, v%d, 0" % (t, t, t2))
        A.e("v_exp_f32 v%d, -v%d" % (al, t))
        A.e("v_add_f32 v%d, v%d, v%d" % (V_MC + qb, V_MC + qb, t))
        for x in xs:
            A.e("v_sub_f32 v%d, v%d, v%d" % (x, x, t))
        A.e("v_mul_f32 v%d, v%d, v%d" % (V_L + qb, V_L + qb, al))
        for r in range(128):
            tt = V_T + (r % 2)
            A.e("v_accvgpr_read_b32 v%d, a%d" % (tt, 128 * qb + r))
            A.e("v_mul_f32 v%d, v%d, v%d" % (tt, tt, al))
            A.e("v_accvgpr_write_b32 a%d, v%d" % (128 * qb + r, tt))
    A.e("s_nop 1")
    A.e("s_setpc_b64 s[%d:%d]" % (S_RET, S_RET + 1))

def softmax_init(buf):
    t, t2 = V_T, V_T + 1
    for qb in range(2):
        xs = [Sreg(buf, qb, r) for r in range(16)]
        for x in xs:
            A.e("v_mul_f32 v%d, s%d, v%d" % (x, S_C, x))
        A.e("v_max3_f32 v%d, v%d, v%d, v%d" % (t, xs[0], xs[1], xs[2]))
        for i in range(3, 15, 2):
            A.e("v_max3_f32 v%d, v%d, v%d, v%d" % (t, t, xs[i], xs[i + 1]))
        A.e("v_max_f32 v%d, v%d, v%d" % (t, t, xs[15]))
        A.e("v_mov_b32 v%d, v%d" % (t2, t))
        A.e("s_nop 1")
        A.e("v_permlane32_swap_b32 v%d, v%d" % (t, t2))
        A.e("s_nop 1")
        A.e("v_max_f32 v%d, v%d, v%d" % (V_MC + qb, t, t2))
        for x in xs:
            A.e("v_sub_f32 v%d, v%d, v%d" % (x, x, V_MC + qb))
        A.e("v_mov_b32 v%d, 0" % (V_L + qb))

def epilogue():
    A.e("s_nop 15")
    INV = 32
    for qb in range(2):
        A.e("v_mov_b32 v%d, v%d" % (V_T, V_L + qb))
        A.e("s_nop 1")
        A.e("v_permlane32_swap_b32 v%d, v%d" % (V_L + qb, V_T))
        A.e("s_nop 1")
        A.e("v_add_f32 v%d, v%d, v%d" % (V_T, V_T, V_L + qb))
        A.e("v_rcp_f32 v%d, v%d" % (INV + qb, V_T))
    WA = 34
    RA = 42
    A.e("v_and_b32 v%d, 31, v%d" % (V_T, V_LANE))
    A.e("v_lshrrev_b32 v%d, 5, v%d" % (V_T + 1, V_LANE))
    A.e("v_lshlrev_b32 v%d, 7, v%d" % (V_T + 2, V_T))
    A.e("v_lshl_add_u32 v%d, v%d, 3, v%d" % (V_T + 2, V_T + 1, V_T + 2))
    A.e("v_add_u32 v%d, s%d, v%d" % (V_T + 2, S_STG, V_T + 2))
    A.e("v_and_b32 v%d, 7, v%d" % (V_T, V_T))
    for c in range(8):
        A.e("v_xor_b32 v%d, %d, v%d" % (V_T + 1, c, V_T))
        A.e("v_lshl_add_u32 v%d, v%d, 4, v%d" % (WA + c, V_T + 1, V_T + 2))
    A.e("v_lshrrev_b32 v%d, 3, v%d" % (V_T, V_LANE))
    A.e("v_and_b32 v%d, 7, v%d" % (V_T + 1, V_LANE))
    A.e("v_xor_b32 v%d, v%d, v%d" % (V_T + 1, V_T + 1, V_T))
    A.e("v_lshlrev_b32 v%d, 7, v%d" % (V_T, V_T))
    A.e("v_lshl_add_u32 v%d, v%d, 4, v%d" % (V_T, V_T + 1, V_T))
    A.e("v_add_u32 v%d, s%d, v%d" % (RA, S_STG, V_T))
    TMP = 48
    RD = 96
    cnt = 0
    pend = None
    def flush(b):
        qb, dp = b // 4, b % 4
        half = b % 2
        A.wait_ds([("W", b)])
        for k in range(4):
            A.ds(("R", b), "ds_read_b128 %s, v%d offset:%d" % (vr(RD + 16 * half + 4 * k, 4), RA, half * 4096 + k * 1024))
    def store(b):
        qb, dp = b // 4, b % 4
        half = b % 2
        A.e("s_add_u32 s%d, s%d, 0x%x" % (S_T0, S_QOFF, qb * 16384 + dp * 128))
        A.wait_ds([("R", b)])
        for k in range(4):
            A.vmem("O", "buffer_store_dwordx4 %s, v%d, s[20:23], s%d offen offset:0 %s" % (vr(RD + 16 * half + 4 * k, 4), V_OST, S_T0, NTO))
            if k < 3:
                A.e("s_add_u32 s%d, s%d, 0x1000" % (S_T0, S_T0))
    for b in range(8):
        qb, dp = b // 4, b % 4
        half = b % 2
        for dd in range(2):
            db = 2 * dp + dd
            for i in range(2):
                base = TMP + 12 * (cnt % 4); cnt += 1
                for k in range(8):
                    A.e("v_accvgpr_read_b32 v%d, a%d" % (base + k, Oreg(qb, db) + 8 * i + k))
                for k in range(4):
                    A.e("v_pk_mul_f32 %s, %s, %s op_sel:[0,%d] op_sel_hi:[1,%d]" % (vr(base + 2 * k, 2), vr(base + 2 * k, 2), vr(INV, 2), qb, qb))
                o = base + 8
                for k in range(4):
                    A.e("v_cvt_pk_bf16_f32 v%d, v%d, v%d" % (o + k, base + 2 * k, base + 2 * k + 1))
                c = 4 * dd + 2 * i
                A.ds(("W", b), "ds_write_b64 v%d, %s offset:%d" % (WA + c, vr(o, 2), half * 4096))
                A.ds(("W", b), "ds_write_b64 v%d, %s offset:%d" % (WA + c + 1, vr(o + 2, 2), half * 4096))
            if dd == 0 and b >= 1:
                store(b - 1)
        flush(b)
    store(7)

def shift_tags(q, d):
    return [(t[0], t[1] + d) if isinstance(t, tuple) and t[0] in ("K", "V") else t for t in q]

def iteration(u, j):
    T = 16 * u + j
    last_unit = (u == 1)
    do_qk = j + 1 <= 15
    pre, post = [], []
    need = []
    if j + 2 <= 15: need.append(("K", T + 2))
    if j + 1 <= 15: need.append(("V", T + 1))
    if j + 3 <= 15: post += dma_v(T + 3)
    if j + 5 <= 15: post += dma_k(T + 5)
    if not last_unit:
        if j == 11:
            post += dma_q("Q1", S_QN, 0, 0, ('stg', 0)) + dma_q("Q1", S_QN, 0, 2, ('slot', 0))
        if j == 12:
            post += dma_q("Q1", S_QN, 0, 1, ('stg', 4096)) + dma_q("Q1", S_QN, 0, 3, ('slot', 16384))
        if j == 13:
            post += dma_v(16) + dma_k(16)
        if j == 14:
            def w1():
                A.wait_vm(["Q1"])
                q_delta([(S_STG, 0), (S_STG, 4096), (S_LDSW, 0), (S_LDSW, 16384)])
            pre += [w1] + q_reads(0)
            def w2():
                A.wait_ds(["Q"])
            post += [w2]
            post += dma_q("Q2", S_QN, 1, 0, ('stg', 0)) + dma_q("Q2", S_QN, 1, 1, ('stg', 4096))
            post += dma_q("Q2", S_QN, 1, 2, ('slot', 0)) + dma_q("Q2", S_QN, 1, 3, ('slot', 16384))
            post += dma_v(17) + dma_k(17)
        if j == 15:
            need.append(("K", 16))
            post += dma_v(18)
    phase1(T, do_qk, True)
    phase2(T, do_qk, pre, post, need, do_kpre=(j + 2 <= 15), first=(j == 0))

def gen_loop(u):
    start = len(A.lines)
    vm0, lds0, site0 = list(A.vm), list(A.lds), site_cnt[0]
    for j in range(1, 5): iteration(u, j)
    text1 = A.lines[start:]
    vm1, lds1 = list(A.vm), list(A.lds)
    del A.lines[start:]
    A.vm = shift_tags(vm1, -4); A.lds = list(lds1); site_cnt[0] = site0
    for j in range(1, 5): iteration(u, j)
    text2 = A.lines[start:]
    assert A.vm == vm1 and A.lds == lds1, "loop not steady"
    assert len(text1) == len(text2)
    merged = []
    for a, b in zip(text1, text2):
        if a != b:
            assert a.strip().startswith("s_waitcnt") and b.strip().startswith("s_waitcnt"), (a, b)
            na = int(a[a.index("(") + 1:a.index(")")]); nb = int(b[b.index("(") + 1:b.index(")")])
            merged.append(a if na <= nb else b)
        else:
            merged.append(a)
    del A.lines[start:]
    A.e("s_mov_b32 s%d, 0" % S_CNT)
    A.label("L_loop_%d" % u)
    A.lines += merged
    A.e("s_add_u32 s%d, s%d, 1" % (S_CNT, S_CNT))
    A.e("s_cmp_lt_u32 s%d, 2" % S_CNT)
    A.e("s_cbranch_scc1 L_loop_%d" % u)
    A.vm = shift_tags(A.vm, 4)

def unit(u):
    T0 = 16 * u
    for s in range(4):
        kread(T0, s)
    phase1(T0 - 1, True, False, do_vpre=False)
    A.wait_vm([("K", T0 + 1), ("V", T0)])
    A.e("s_barrier")
    if u == 0:
        emit_seq(dma_v(2))
    emit_seq(dma_k(T0 + 4))
    A.e("s_nop 7")
    softmax_init(0)
    for s in range(4):
        kread(T0 + 1, s)
    stamp()
    iteration(u, 0)
    gen_loop(u)
    for j in range(9, 16):
        iteration(u, j)
    stamp()
    if u == 0:
        A.wait_vm(["Q2"])
        q_delta([(S_STG, 0), (S_STG, 4096), (S_LDSW, 0), (S_LDSW, 16384)])
        for f in q_reads(1): f()
        A.wait_ds(["Q"])
        emit_seq(dma_k(18)); emit_seq(dma_k(19))
    stamp()
    epilogue()
    if u == 0:
        A.e("s_mov_b32 s%d, s%d" % (S_QOFF, S_QN))
    stamp()

hdr = open("standalone__gqa_softmax__near_ridge.s.ref").read().split("\n")
head = []
for l in hdr:
    if l.startswith("; @launch"):
        head.append("; @launch grid=(256,1,1) block=(256,1,1) lds=163840")
    elif l.startswith(";"):
        head.append(l)
    else:
        break

A.e("s_cmp_ge_u32 s2, 256")
A.e("s_cbranch_scc1 L_end")
A.e("s_load_dwordx4 s[4:7], s[0:1], 0")
A.e("s_load_dwordx4 s[36:39], s[0:1], 16")
if STAMPS:
    A.e("s_load_dwordx2 s[48:49], s[0:1], 40")
stamp()
A.e("s_and_b32 s42, s2, 7")
A.e("s_lshr_b32 s43, s2, 3")
A.e("s_and_b32 s44, s43, 1")
A.e("s_lshr_b32 s43, s43, 1")
A.e("s_lshl_b32 s42, s42, 4")
A.e("s_add_u32 s42, s42, s43")
A.e("s_lshl_b32 s45, s42, 1")
A.e("s_add_u32 s45, s45, s44")
A.e("v_lshrrev_b32 v25, 6, v0")
A.e("v_and_b32 v0, 63, v0")
A.e("s_nop 0")
A.e("v_readfirstlane_b32 s%d, v25" % S_WAVE)
A.e("s_mov_b32 s%d, %s" % (S_C, f32hex(C_SCALE)))
A.e("s_nop 2")
A.e("s_lshl_b32 s%d, s%d, 12" % (S_LDSW, S_WAVE))
A.e("s_lshl_b32 s%d, s%d, 13" % (S_STG, S_WAVE))
A.e("s_add_u32 s%d, s%d, 0x%x" % (S_STG, S_STG, STG))
A.e("s_lshl_b32 s%d, s42, 18" % S_KOFF)
A.e("s_add_u32 s%d, s%d, s%d" % (S_KOFF, S_KOFF, S_LDSW))
A.e("s_mov_b32 s%d, s%d" % (S_VOFF, S_KOFF))
A.e("s_lshl_b32 s%d, s45, 17" % S_QOFF)
A.e("s_lshl_b32 s43, s%d, 15" % S_WAVE)
A.e("s_add_u32 s%d, s%d, s43" % (S_QOFF, S_QOFF))
A.e("s_add_u32 s%d, s%d, 0x2000000" % (S_QN, S_QOFF))
A.e("s_and_b32 s46, s%d, 1" % S_WAVE)
A.e("s_lshl_b32 s46, s46, 7")
A.e("s_xor_b32 s47, s46, 0x80")
A.e("v_and_b32 v25, 31, v0")
A.e("v_lshrrev_b32 v26, 5, v0")
A.e("v_lshlrev_b32 v27, 9, v25")
A.e("v_and_b32 v28, 15, v25")
A.e("v_xor_b32 v28, v28, v26")
for f in range(8):
    A.e("v_xor_b32 v29, %d, v28" % (2 * f))
    A.e("v_lshl_add_u32 v%d, v29, 4, v27" % (V_ADK + f))
A.e("s_and_b32 s43, s%d, 1" % S_WAVE)
A.e("s_lshl_b32 s43, s43, 3")
A.e("v_lshlrev_b32 v27, 9, v26")
A.e("v_xor_b32 v28, v25, v26")
A.e("v_xor_b32 v28, s43, v28")
for k in range(4):
    A.e("v_xor_b32 v29, %d, v28" % (2 * k))
    A.e("v_lshl_add_u32 v%d, v29, 4, v27" % (V_OFFK + k))
A.e("v_lshlrev_b32 v28, 2, v26")
A.e("v_xor_b32 v28, v25, v28")
for k2 in range(2):
    A.e("v_xor_b32 v29, %d, v28" % (8 * k2))
    A.e("v_lshl_add_u32 v%d, v29, 4, v27" % (V_OFFV + k2))
A.e("v_bfe_u32 v27, v0, 2, 2")
A.e("v_lshl_add_u32 v28, v26, 2, v27")
A.e("v_lshlrev_b32 v28, 9, v28")
A.e("v_add_u32 v28, 0x10000, v28")
A.e("v_bfe_u32 v29, v0, 4, 1")
A.e("v_lshl_add_u32 v28, v29, 5, v28")
A.e("v_and_b32 v29, 3, v0")
A.e("v_lshl_add_u32 v28, v29, 3, v28")
for f in range(4):
    A.e("v_xor_b32 v29, %d, v27" % f)
    A.e("v_lshl_add_u32 v%d, v29, 6, v28" % (V_ADV + f))
A.e("v_lshrrev_b32 v27, 3, v0")
A.e("v_lshlrev_b32 v27, 9, v27")
A.e("v_and_b32 v28, 7, v0")
A.e("v_lshl_add_u32 v%d, v28, 4, v27" % V_OST)
A.e("s_waitcnt lgkmcnt(0)")
for (d, p) in ((8, 4), (12, 6), (16, 36), (20, 38)):
    A.e("s_mov_b32 s%d, s%d" % (d, p))
    A.e("s_and_b32 s%d, s%d, 0xffff" % (d + 1, p + 1))
    A.e("s_mov_b32 s%d, 0x4000000" % (d + 2))
    A.e("s_mov_b32 s%d, 0x20000" % (d + 3))
A.e("s_mov_b32 s35, s46")
A.e("s_mov_b32 s36, s47")
emit_seq(dma_k(0))
emit_seq(dma_q("Q1", S_QOFF, 0, 0, ('stg', 0)) + dma_q("Q1", S_QOFF, 0, 1, ('stg', 4096)) +
         dma_q("Q1", S_QOFF, 0, 2, ('slot', 32768)) + dma_q("Q1", S_QOFF, 0, 3, ('slot', 49152)))
for p in range(4):
    emit_seq(dma_q("Q2", S_QOFF, 1, p, ('slot', 65536 + p * 16384)))
emit_seq(dma_k(1))
A.wait_vm(["Q1"])
q_delta([(S_STG, 0), (S_STG, 4096), (S_LDSW, 32768), (S_LDSW, 49152)])
for f in q_reads(0): f()
A.wait_vm(["Q2"])
q_delta([(S_LDSW, 65536 + p * 16384) for p in range(4)])
for f in q_reads(1): f()
A.wait_ds(["Q"])
emit_seq(dma_v(0)); emit_seq(dma_k(2))
emit_seq(dma_v(1)); emit_seq(dma_k(3))
A.e("s_barrier")
stamp()
unit(0)
unit(1)
if STAMPS:
    A.e("s_waitcnt vmcnt(0)")
    stamp()
    n = nstamp[0]
    A.e("s_mov_b32 s8, s48")
    A.e("s_and_b32 s9, s49, 0xffff")
    A.e("s_mov_b32 s10, 0x1000000")
    A.e("s_mov_b32 s11, 0x20000")
    A.e("s_lshl_b32 s32, s2, 2")
    A.e("s_add_u32 s32, s32, s%d" % S_WAVE)
    A.e("s_mul_i32 s32, s32, %d" % (n * 8))
    A.e("v_mov_b32 v1, 0")
    for i in range(n):
        A.e("v_mov_b32 v2, s%d" % (50 + 2 * i))
        A.e("v_mov_b32 v3, s%d" % (51 + 2 * i))
        A.e("buffer_store_dwordx2 v[2:3], v1, s[8:11], s32 offen offset:%d" % (8 * i))
        A.e("s_nop 1")
    print("nstamps", n)
A.label("L_end")
A.e("s_endpgm")
slow_block(0)
slow_block(1)

body = "\n".join(A.lines)
text = "\n".join(head) + """
.amdgcn_target "amdgcn-amd-amdhsa--gfx950"
.text
.globl %s
.p2align 8
.type %s,@function
%s:
%s
.section .rodata,"a"
.p2align 6
.amdhsa_kernel %s
  .amdhsa_next_free_vgpr 512
  .amdhsa_next_free_sgpr 102
  .amdhsa_accum_offset 256
  .amdhsa_group_segment_fixed_size 0
  .amdhsa_kernarg_size 48
  .amdhsa_user_sgpr_count 2
  .amdhsa_user_sgpr_kernarg_segment_ptr 1
  .amdhsa_system_sgpr_workgroup_id_x 1
.end_amdhsa_kernel
""" % (NAME, NAME, NAME, body, NAME)
open(OUT, "w").write(text)
print("wrote", OUT, len(A.lines), "lines", len(text), "bytes")
```

```python
import sys, struct, os

OUT = sys.argv[1] if len(sys.argv) > 1 else "standalone__gqa_softmax__near_ridge.s"
STAMPS = len(sys.argv) > 2 and sys.argv[2] in ("stamps", "dbg")
DBG = len(sys.argv) > 2 and sys.argv[2] == "dbg"
NAME = "standalone__gqa_softmax__near_ridge_kernel"
NT = os.environ.get("NT", "nt")
NTO = os.environ.get("NTO", "")

def f32hex(x):
    return "0x%08x" % struct.unpack("<I", struct.pack("<f", x))[0]

C_SCALE = 0.0625 * 1.4426950408889634

V_LANE = 0
V_OST = 1
V_OFFK = 2
V_OFFV = 6
V_ADK = 8
V_ADV = 16
V_MC = 20
V_L = 22
V_MX = 24
V_T = 25
V_KF = 32
V_VF = 48
V_S = 64
V_Q = 128

S_KOFF, S_VOFF, S_LDSW, S_CNT, S_C, S_QOFF, S_WAVE, S_QN, S_T0, S_T1, S_STG = 24, 25, 26, 27, 28, 29, 30, 31, 32, 33, 34
S_RET = 40
STG = 131072

def Sreg(buf, qb, r=0): return V_S + 32 * buf + 16 * qb + r
def Qreg(qb, s): return V_Q + 64 * qb + 4 * s
def Oreg(qb, db): return 128 * qb + 16 * db
def vr(a, n): return "v[%d:%d]" % (a, a + n - 1)
def ar(a, n): return "a[%d:%d]" % (a, a + n - 1)

class Asm:
    def __init__(self):
        self.lines = []
        self.lds = []
        self.vm = []
    def e(self, s):
        self.lines.append("    " + s)
    def label(self, s):
        self.lines.append(s + ":")
    def ds(self, tag, s):
        self.e(s); self.lds.append(tag)
    def vmem(self, tag, s):
        self.e(s); self.vm.append(tag)
    def wait_ds(self, tags, force=False):
        if not isinstance(tags, list): tags = [tags]
        idx = [i for i, t in enumerate(self.lds) if t in tags]
        if not idx:
            if not force: return
            n = min(len(self.lds), 15)
        else:
            n = len(self.lds) - 1 - idx[-1]
        n = min(n, 15)
        self.e("s_waitcnt lgkmcnt(%d)" % n)
        self.lds = self.lds[len(self.lds) - n:] if n else []
    def wait_vm(self, tags, force=True):
        idx = [i for i, t in enumerate(self.vm) if t in tags]
        if not idx:
            if not force: return
            n = len(self.vm)
        else:
            n = len(self.vm) - 1 - idx[-1]
        n = min(n, 63)
        self.e("s_waitcnt vmcnt(%d)" % n)
        self.vm = self.vm[len(self.vm) - n:] if n else []

A = Asm()
nstamp = [0]
def stamp():
    if not STAMPS: return
    i = nstamp[0]; nstamp[0] += 2
    A.e("s_memrealtime s[%d:%d]" % (50 + 2 * i, 51 + 2 * i))
    A.e("s_memtime s[%d:%d]" % (52 + 2 * i, 53 + 2 * i))
    A.e("s_waitcnt lgkmcnt(0)")
    A.lds = []

site_cnt = [0]

def kslot(T):
    u, t = T // 16, T % 16
    return (t + 2 * u) % 4
def vslot(T):
    return T % 4

def kread(T, s):
    e_, f = s // 8, s % 8
    A.ds(("K", s), "ds_read_b128 %s, v%d offset:%d" % (vr(V_KF + 4 * (s % 4), 4), V_ADK + f, kslot(T) * 16384 + e_ * 256))

def vread(T, fidx, t):
    ks, db = fidx // 8, fidx % 8
    e_, f = db // 4, db % 4
    A.ds(("V", fidx), "ds_read_b64_tr_b16 %s, v%d offset:%d" % (
        vr(V_VF + 4 * (fidx % 4) + 2 * t, 2), V_ADV + f, vslot(T) * 16384 + ks * 8192 + t * 4096 + e_ * 256))

def dma_k(T):
    out = []
    if T == 16:
        out.append(lambda: A.e("s_add_u32 s%d, s%d, 0x%x" % (S_KOFF, S_KOFF, 127 * 262144)))
    out.append(lambda: A.e("s_add_u32 m0, s%d, 0x%x" % (S_LDSW, kslot(T) * 16384)))
    for k in range(4):
        def f(k=k):
            A.vmem(("K", T), "buffer_load_dwordx4 v%d, s[12:15], s%d offen offset:%d %s lds" % (V_OFFK + k, S_KOFF, k * 1024, NT))
        out.append(f)
    out.append(lambda: A.e("s_add_u32 s%d, s%d, 0x4000" % (S_KOFF, S_KOFF)))
    return out

def dma_v(T):
    out = []
    if T == 16:
        out.append(lambda: A.e("s_add_u32 s%d, s%d, 0x%x" % (S_VOFF, S_VOFF, 127 * 262144)))
    out.append(lambda: A.e("s_add_u32 m0, s%d, 0x%x" % (S_LDSW, 65536 + vslot(T) * 16384)))
    for k in range(4):
        def f(k=k):
            A.vmem(("V", T), "buffer_load_dwordx4 v%d, s[16:19], s%d offen offset:%d %s lds" % (V_OFFV + (k % 2), S_VOFF, k * 1024, NT))
        out.append(f)
    out.append(lambda: A.e("s_add_u32 s%d, s%d, 0x4000" % (S_VOFF, S_VOFF)))
    return out

def dma_q(tag, sq, qb, p, dest):
    out = []
    def pre():
        A.e("s_add_u32 s%d, s%d, 0x%x" % (S_T0, sq, qb * 16384 + p * 4096))
        if dest[0] == 'stg':
            A.e("s_add_u32 m0, s%d, 0x%x" % (S_STG, dest[1]))
        else:
            A.e("s_add_u32 m0, s%d, 0x%x" % (S_LDSW, dest[1]))
    out.append(pre)
    for k in range(4):
        def f(k=k):
            A.e("v_xor_b32 v%d, s%d, v%d" % (V_T + 6, 35 + (p % 2), V_OFFK + k))
            A.vmem(tag, "buffer_load_dwordx4 v%d, s[8:11], s%d offen offset:%d %s lds" % (V_T + 6, S_T0, k * 1024, NT))
        out.append(f)
    return out

def emit_seq(seq):
    for f in seq:
        f()
        A.e("s_nop 0")

def q_delta(bases):
    d = V_T + 5
    t = V_T + 4
    A.e("v_bfe_u32 v%d, v%d, 3, 2" % (t, V_LANE))
    for p in range(4):
        sg, c = bases[p]
        A.e("s_add_u32 s%d, s%d, 0x%x" % (S_T0, sg, (c - p * 4096) & 0xffffffff))
        if p == 0:
            A.e("v_mov_b32 v%d, s%d" % (d, S_T0))
        else:
            A.e("v_mov_b32 v%d, s%d" % (V_T + 3, S_T0))
            A.e("v_cmp_eq_u32 vcc, %d, v%d" % (p, t))
            A.e("s_nop 1")
            A.e("v_cndmask_b32 v%d, v%d, v%d, vcc" % (d, d, V_T + 3))

def q_reads(qb):
    out = []
    for s in range(16):
        def f(s=s):
            e_, ff = s // 8, s % 8
            A.e("v_add_u32 v%d, v%d, v%d" % (V_T + 4, V_ADK + ff, V_T + 5))
            A.ds("Q", "ds_read_b128 %s, v%d offset:%d" % (vr(Qreg(qb, s), 4), V_T + 4, e_ * 256))
        out.append(f)
    return out

def softmaxB_pairs(buf):
    groups = []
    for ks in range(2):
        for qb in range(2):
            for i in range(4):
                r0 = Sreg(buf, qb, 8 * ks + 2 * i)
                dst = Sreg(buf, qb, 8 * ks + i)
                g1 = ["v_exp_f32 v%d, v%d" % (r0, r0), "v_exp_f32 v%d, v%d" % (r0 + 1, r0 + 1)]
                g2 = ["v_add_f32 v%d, v%d, v%d" % (V_L + qb, V_L + qb, r0),
                      "v_add_f32 v%d, v%d, v%d" % (V_L + qb, V_L + qb, r0 + 1),
                      "v_cvt_pk_bf16_f32 v%d, v%d, v%d" % (dst, r0, r0 + 1)]
                groups.append((g1, g2))
    return groups

def softmaxA_ops(buf):
    ops = []
    xs = []
    for qb in range(2):
        for r in range(16):
            x = Sreg(buf, qb, r)
            ops.append("v_fma_f32 v%d, v%d, s%d, -v%d" % (x, x, S_C, V_MC + qb))
            xs.append(x)
    mx = []
    mx.append((2, "v_max3_f32 v%d, v%d, v%d, v%d" % (V_MX, xs[0], xs[1], xs[2])))
    i = 3
    while i < 32:
        a = xs[i]; b = xs[i + 1] if i + 1 < 32 else xs[i]
        mx.append((min(i + 1, 31), "v_max3_f32 v%d, v%d, v%d, v%d" % (V_MX, V_MX, a, b)))
        i += 2
    res = []
    mi = 0
    for k, o in enumerate(ops):
        res.append(o)
        while mi < len(mx) and mx[mi][0] <= k - 1:
            res.append(mx[mi][1]); mi += 1
    while mi < len(mx):
        res.append(mx[mi][1]); mi += 1
    return res

def phase1(T, do_qk, do_smB, do_vpre=True):
    nb = (T + 1) % 2
    cb = T % 2
    groups = softmaxB_pairs(cb) if do_smB else []
    if not do_qk:
        for f in range(4):
            vread(T, f, 0); vread(T, f, 1)
        for g1, g2 in groups:
            for o in g1 + g2: A.e(o)
        return
    for m in range(32):
        s, qb = m // 2, m % 2
        if qb == 0:
            A.wait_ds(("K", s), force=True)
        c = "0" if s == 0 else vr(Sreg(nb, qb), 16)
        A.e("v_mfma_f32_32x32x16_bf16 %s, %s, %s, %s" % (vr(Sreg(nb, qb), 16), vr(V_KF + 4 * (s % 4), 4), vr(Qreg(qb, s), 4), c))
        if qb == 1 and s + 4 < 16:
            kread(T + 1, s + 4)
        if groups:
            for o in groups[m // 2][m % 2]: A.e(o)
        if do_vpre and m >= 24:
            vread(T, (m - 24) // 2, (m - 24) % 2)

def phase2(T, do_smA, pre_seq, post_seq, need_tags, do_kpre, first=False):
    cb = T % 2
    nb = (T + 1) % 2
    smA = softmaxA_ops(nb) if do_smA else []
    START_A = 6
    BAR_AT = 10
    ai = 0
    pi = 0
    di = 0
    npre = -(-len(pre_seq) // (BAR_AT + 1))
    npost = -(-len(post_seq) // (31 - BAR_AT))
    for m in range(32):
        f = m // 2; ks = m // 16; db = f % 8; qb = m % 2
        if qb == 0:
            A.wait_ds(("V", f), force=True)
        c = "0" if (first and ks == 0) else ar(Oreg(qb, db), 16)
        A.e("v_mfma_f32_32x32x16_bf16 %s, %s, %s, %s" % (ar(Oreg(qb, db), 16), vr(V_VF + 4 * (f % 4), 4), vr(Sreg(cb, qb, 8 * ks), 4), c))
        if qb == 1 and f + 4 < 16:
            vread(T, f + 4, 0); vread(T, f + 4, 1)
        if m >= START_A:
            for _ in range(2):
                if ai < len(smA):
                    A.e(smA[ai]); ai += 1
        if m <= BAR_AT:
            for _ in range(npre):
                if pi < len(pre_seq):
                    pre_seq[pi](); pi += 1
        if m == BAR_AT:
            A.wait_vm(need_tags)
            A.e("s_barrier")
        if m > BAR_AT:
            for z in range(npost):
                if di < len(post_seq):
                    if z > 0: A.e("s_nop 0")
                    post_seq[di](); di += 1
        if do_kpre and m >= 28:
            kread(T + 2, m - 28)
    while ai < len(smA):
        A.e(smA[ai]); ai += 1
    assert di == len(post_seq) and pi == len(pre_seq)
    if do_smA:
        site = site_cnt[0]; site_cnt[0] += 1
        A.e("v_cmp_lt_f32 vcc, 0x41000000, v%d" % V_MX)
        A.e("s_cbranch_vccz L_back_%d" % site)
        A.e("s_call_b64 s[%d:%d], L_slow_%d" % (S_RET, S_RET + 1, nb))
        A.label("L_back_%d" % site)

def slow_block(buf):
    A.label("L_slow_%d" % buf)
    A.e("s_nop 15")
    t, t2, al = V_T, V_T + 1, V_T + 2
    for qb in range(2):
        xs = [Sreg(buf, qb, r) for r in range(16)]
        A.e("v_max3_f32 v%d, v%d, v%d, v%d" % (t, xs[0], xs[1], xs[2]))
        for i in range(3, 15, 2):
            A.e("v_max3_f32 v%d, v%d, v%d, v%d" % (t, t, xs[i], xs[i + 1]))
        A.e("v_max_f32 v%d, v%d, v%d" % (t, t, xs[15]))
        A.e("v_mov_b32 v%d, v%d" % (t2, t))
        A.e("s_nop 1")
        A.e("v_permlane32_swap_b32 v%d, v%d" % (t, t2))
        A.e("s_nop 1")
        A.e("v_max3_f32 v%d, v%d, v%d, 0" % (t, t, t2))
        A.e("v_exp_f32 v%d, -v%d" % (al, t))
        A.e("v_add_f32 v%d, v%d, v%d" % (V_MC + qb, V_MC + qb, t))
        for x in xs:
            A.e("v_sub_f32 v%d, v%d, v%d" % (x, x, t))
        A.e("v_mul_f32 v%d, v%d, v%d" % (V_L + qb, V_L + qb, al))
        for r in range(128):
            tt = V_T + (r % 2)
            A.e("v_accvgpr_read_b32 v%d, a%d" % (tt, 128 * qb + r))
            A.e("v_mul_f32 v%d, v%d, v%d" % (tt, tt, al))
            A.e("v_accvgpr_write_b32 a%d, v%d" % (128 * qb + r, tt))
    A.e("s_nop 1")
    A.e("s_setpc_b64 s[%d:%d]" % (S_RET, S_RET + 1))

def softmax_init(buf):
    t, t2 = V_T, V_T + 1
    for qb in range(2):
        xs = [Sreg(buf, qb, r) for r in range(16)]
        for x in xs:
            A.e("v_mul_f32 v%d, s%d, v%d" % (x, S_C, x))
        A.e("v_max3_f32 v%d, v%d, v%d, v%d" % (t, xs[0], xs[1], xs[2]))
        for i in range(3, 15, 2):
            A.e("v_max3_f32 v%d, v%d, v%d, v%d" % (t, t, xs[i], xs[i + 1]))
        A.e("v_max_f32 v%d, v%d, v%d" % (t, t, xs[15]))
        A.e("v_mov_b32 v%d, v%d" % (t2, t))
        A.e("s_nop 1")
        A.e("v_permlane32_swap_b32 v%d, v%d" % (t, t2))
        A.e("s_nop 1")
        A.e("v_max_f32 v%d, v%d, v%d" % (V_MC + qb, t, t2))
        for x in xs:
            A.e("v_sub_f32 v%d, v%d, v%d" % (x, x, V_MC + qb))
        A.e("v_mov_b32 v%d, 0" % (V_L + qb))

def epilogue():
    A.e("s_nop 15")
    INV = 32
    for qb in range(2):
        A.e("v_mov_b32 v%d, v%d" % (V_T, V_L + qb))
        A.e("s_nop 1")
        A.e("v_permlane32_swap_b32 v%d, v%d" % (V_L + qb, V_T))
        A.e("s_nop 1")
        A.e("v_add_f32 v%d, v%d, v%d" % (V_T, V_T, V_L + qb))
        A.e("v_rcp_f32 v%d, v%d" % (INV + qb, V_T))
    WA = 34
    RA = 42
    A.e("v_and_b32 v%d, 31, v%d" % (V_T, V_LANE))
    A.e("v_lshrrev_b32 v%d, 5, v%d" % (V_T + 1, V_LANE))
    A.e("v_lshlrev_b32 v%d, 7, v%d" % (V_T + 2, V_T))
    A.e("v_lshl_add_u32 v%d, v%d, 3, v%d" % (V_T + 2, V_T + 1, V_T + 2))
    A.e("v_add_u32 v%d, s%d, v%d" % (V_T + 2, S_STG, V_T + 2))
    A.e("v_and_b32 v%d, 7, v%d" % (V_T, V_T))
    for c in range(8):
        A.e("v_xor_b32 v%d, %d, v%d" % (V_T + 1, c, V_T))
        A.e("v_lshl_add_u32 v%d, v%d, 4, v%d" % (WA + c, V_T + 1, V_T + 2))
    A.e("v_lshrrev_b32 v%d, 3, v%d" % (V_T, V_LANE))
    A.e("v_and_b32 v%d, 7, v%d" % (V_T + 1, V_LANE))
    A.e("v_xor_b32 v%d, v%d, v%d" % (V_T + 1, V_T + 1, V_T))
    A.e("v_lshlrev_b32 v%d, 7, v%d" % (V_T, V_T))
    A.e("v_lshl_add_u32 v%d, v%d, 4, v%d" % (V_T, V_T + 1, V_T))
    A.e("v_add_u32 v%d, s%d, v%d" % (RA, S_STG, V_T))
    TMP = 48
    RD = 96
    cnt = 0
    pend = None
    def flush(b):
        qb, dp = b // 4, b % 4
        half = b % 2
        A.wait_ds([("W", b)])
        for k in range(4):
            A.ds(("R", b), "ds_read_b128 %s, v%d offset:%d" % (vr(RD + 16 * half + 4 * k, 4), RA, half * 4096 + k * 1024))
    def store(b):
        qb, dp = b // 4, b % 4
        half = b % 2
        A.e("s_add_u32 s%d, s%d, 0x%x" % (S_T0, S_QOFF, qb * 16384 + dp * 128))
        A.wait_ds([("R", b)])
        for k in range(4):
            A.vmem("O", "buffer_store_dwordx4 %s, v%d, s[20:23], s%d offen offset:0 %s" % (vr(RD + 16 * half + 4 * k, 4), V_OST, S_T0, NTO))
            if k < 3:
                A.e("s_add_u32 s%d, s%d, 0x1000" % (S_T0, S_T0))
    for b in range(8):
        qb, dp = b // 4, b % 4
        half = b % 2
        for dd in range(2):
            db = 2 * dp + dd
            for i in range(2):
                base = TMP + 12 * (cnt % 4); cnt += 1
                for k in range(8):
                    A.e("v_accvgpr_read_b32 v%d, a%d" % (base + k, Oreg(qb, db) + 8 * i + k))
                for k in range(4):
                    A.e("v_pk_mul_f32 %s, %s, %s op_sel:[0,%d] op_sel_hi:[1,%d]" % (vr(base + 2 * k, 2), vr(base + 2 * k, 2), vr(INV, 2), qb, qb))
                o = base + 8
                for k in range(4):
                    A.e("v_cvt_pk_bf16_f32 v%d, v%d, v%d" % (o + k, base + 2 * k, base + 2 * k + 1))
                c = 4 * dd + 2 * i
                A.ds(("W", b), "ds_write_b64 v%d, %s offset:%d" % (WA + c, vr(o, 2), half * 4096))
                A.ds(("W", b), "ds_write_b64 v%d, %s offset:%d" % (WA + c + 1, vr(o + 2, 2), half * 4096))
            if dd == 0 and b >= 1:
                store(b - 1)
        flush(b)
    store(7)

def shift_tags(q, d):
    return [(t[0], t[1] + d) if isinstance(t, tuple) and t[0] in ("K", "V") else t for t in q]

def iteration(u, j):
    T = 16 * u + j
    last_unit = (u == 1)
    do_qk = j + 1 <= 15
    pre, post = [], []
    need = []
    if j + 2 <= 15: need.append(("K", T + 2))
    if j + 1 <= 15: need.append(("V", T + 1))
    if j + 3 <= 15: post += dma_v(T + 3)
    if j + 5 <= 15: post += dma_k(T + 5)
    if not last_unit:
        if j == 11:
            post += dma_q("Q1", S_QN, 0, 0, ('stg', 0)) + dma_q("Q1", S_QN, 0, 2, ('slot', 0))
        if j == 12:
            post += dma_q("Q1", S_QN, 0, 1, ('stg', 4096)) + dma_q("Q1", S_QN, 0, 3, ('slot', 16384))
        if j == 13:
            post += dma_v(16) + dma_k(16)
        if j == 14:
            def w1():
                A.wait_vm(["Q1"])
                q_delta([(S_STG, 0), (S_STG, 4096), (S_LDSW, 0), (S_LDSW, 16384)])
            pre += [w1] + q_reads(0)
            def w2():
                A.wait_ds(["Q"])
            post += [w2]
            post += dma_q("Q2", S_QN, 1, 0, ('stg', 0)) + dma_q("Q2", S_QN, 1, 1, ('stg', 4096))
            post += dma_q("Q2", S_QN, 1, 2, ('slot', 0)) + dma_q("Q2", S_QN, 1, 3, ('slot', 16384))
            post += dma_v(17) + dma_k(17)
        if j == 15:
            need.append(("K", 16))
            post += dma_v(18)
    phase1(T, do_qk, True)
    phase2(T, do_qk, pre, post, need, do_kpre=(j + 2 <= 15), first=(j == 0))

def gen_loop(u):
    start = len(A.lines)
    vm0, lds0, site0 = list(A.vm), list(A.lds), site_cnt[0]
    for j in range(1, 5): iteration(u, j)
    text1 = A.lines[start:]
    vm1, lds1 = list(A.vm), list(A.lds)
    del A.lines[start:]
    A.vm = shift_tags(vm1, -4); A.lds = list(lds1); site_cnt[0] = site0
    for j in range(1, 5): iteration(u, j)
    text2 = A.lines[start:]
    assert A.vm == vm1 and A.lds == lds1, "loop not steady"
    assert len(text1) == len(text2)
    merged = []
    for a, b in zip(text1, text2):
        if a != b:
            assert a.strip().startswith("s_waitcnt") and b.strip().startswith("s_waitcnt"), (a, b)
            na = int(a[a.index("(") + 1:a.index(")")]); nb = int(b[b.index("(") + 1:b.index(")")])
            merged.append(a if na <= nb else b)
        else:
            merged.append(a)
    del A.lines[start:]
    A.e("s_mov_b32 s%d, 0" % S_CNT)
    A.label("L_loop_%d" % u)
    A.lines += merged
    A.e("s_add_u32 s%d, s%d, 1" % (S_CNT, S_CNT))
    A.e("s_cmp_lt_u32 s%d, 2" % S_CNT)
    A.e("s_cbranch_scc1 L_loop_%d" % u)
    A.vm = shift_tags(A.vm, 4)

def unit(u):
    T0 = 16 * u
    for s in range(4):
        kread(T0, s)
    phase1(T0 - 1, True, False, do_vpre=False)
    A.wait_vm([("K", T0 + 1), ("V", T0)])
    A.e("s_barrier")
    if u == 0:
        emit_seq(dma_v(2))
    emit_seq(dma_k(T0 + 4))
    A.e("s_nop 7")
    softmax_init(0)
    for s in range(4):
        kread(T0 + 1, s)
    stamp()
    iteration(u, 0)
    gen_loop(u)
    for j in range(9, 16):
        iteration(u, j)
    stamp()
    if u == 0:
        A.wait_vm(["Q2"])
        q_delta([(S_STG, 0), (S_STG, 4096), (S_LDSW, 0), (S_LDSW, 16384)])
        for f in q_reads(1): f()
        A.wait_ds(["Q"])
        emit_seq(dma_k(18)); emit_seq(dma_k(19))
    stamp()
    epilogue()
    if u == 0:
        A.e("s_mov_b32 s%d, s%d" % (S_QOFF, S_QN))
    stamp()

hdr = open("standalone__gqa_softmax__near_ridge.s.ref").read().split("\n")
head = []
for l in hdr:
    if l.startswith("; @launch"):
        head.append("; @launch grid=(256,1,1) block=(256,1,1) lds=163840")
    elif l.startswith(";"):
        head.append(l)
    else:
        break

A.e("s_cmp_ge_u32 s2, 256")
A.e("s_cbranch_scc1 L_end")
A.e("s_load_dwordx4 s[4:7], s[0:1], 0")
A.e("s_load_dwordx4 s[36:39], s[0:1], 16")
if STAMPS:
    A.e("s_load_dwordx2 s[48:49], s[0:1], %d" % (32 if DBG else 40))
stamp()
A.e("s_and_b32 s42, s2, 7")
A.e("s_lshr_b32 s43, s2, 3")
A.e("s_and_b32 s44, s43, 1")
A.e("s_lshr_b32 s43, s43, 1")
A.e("s_lshl_b32 s42, s42, 4")
A.e("s_add_u32 s42, s42, s43")
A.e("s_lshl_b32 s45, s42, 1")
A.e("s_add_u32 s45, s45, s44")
A.e("v_lshrrev_b32 v25, 6, v0")
A.e("v_and_b32 v0, 63, v0")
A.e("s_nop 0")
A.e("v_readfirstlane_b32 s%d, v25" % S_WAVE)
A.e("s_mov_b32 s%d, %s" % (S_C, f32hex(C_SCALE)))
A.e("s_nop 2")
A.e("s_lshl_b32 s%d, s%d, 12" % (S_LDSW, S_WAVE))
A.e("s_lshl_b32 s%d, s%d, 13" % (S_STG, S_WAVE))
A.e("s_add_u32 s%d, s%d, 0x%x" % (S_STG, S_STG, STG))
A.e("s_lshl_b32 s%d, s42, 18" % S_KOFF)
A.e("s_add_u32 s%d, s%d, s%d" % (S_KOFF, S_KOFF, S_LDSW))
A.e("s_mov_b32 s%d, s%d" % (S_VOFF, S_KOFF))
A.e("s_lshl_b32 s%d, s45, 17" % S_QOFF)
A.e("s_lshl_b32 s43, s%d, 15" % S_WAVE)
A.e("s_add_u32 s%d, s%d, s43" % (S_QOFF, S_QOFF))
A.e("s_add_u32 s%d, s%d, 0x2000000" % (S_QN, S_QOFF))
A.e("s_and_b32 s46, s%d, 1" % S_WAVE)
A.e("s_lshl_b32 s46, s46, 7")
A.e("s_xor_b32 s47, s46, 0x80")
A.e("v_and_b32 v25, 31, v0")
A.e("v_lshrrev_b32 v26, 5, v0")
A.e("v_lshlrev_b32 v27, 9, v25")
A.e("v_and_b32 v28, 15, v25")
A.e("v_xor_b32 v28, v28, v26")
for f in range(8):
    A.e("v_xor_b32 v29, %d, v28" % (2 * f))
    A.e("v_lshl_add_u32 v%d, v29, 4, v27" % (V_ADK + f))
A.e("s_and_b32 s43, s%d, 1" % S_WAVE)
A.e("s_lshl_b32 s43, s43, 3")
A.e("v_lshlrev_b32 v27, 9, v26")
A.e("v_xor_b32 v28, v25, v26")
A.e("v_xor_b32 v28, s43, v28")
for k in range(4):
    A.e("v_xor_b32 v29, %d, v28" % (2 * k))
    A.e("v_lshl_add_u32 v%d, v29, 4, v27" % (V_OFFK + k))
A.e("v_lshlrev_b32 v28, 2, v26")
A.e("v_xor_b32 v28, v25, v28")
for k2 in range(2):
    A.e("v_xor_b32 v29, %d, v28" % (8 * k2))
    A.e("v_lshl_add_u32 v%d, v29, 4, v27" % (V_OFFV + k2))
A.e("v_bfe_u32 v27, v0, 2, 2")
A.e("v_lshl_add_u32 v28, v26, 2, v27")
A.e("v_lshlrev_b32 v28, 9, v28")
A.e("v_add_u32 v28, 0x10000, v28")
A.e("v_bfe_u32 v29, v0, 4, 1")
A.e("v_lshl_add_u32 v28, v29, 5, v28")
A.e("v_and_b32 v29, 3, v0")
A.e("v_lshl_add_u32 v28, v29, 3, v28")
for f in range(4):
    A.e("v_xor_b32 v29, %d, v27" % f)
    A.e("v_lshl_add_u32 v%d, v29, 6, v28" % (V_ADV + f))
A.e("v_lshrrev_b32 v27, 3, v0")
A.e("v_lshlrev_b32 v27, 9, v27")
A.e("v_and_b32 v28, 7, v0")
A.e("v_lshl_add_u32 v%d, v28, 4, v27" % V_OST)
A.e("s_waitcnt lgkmcnt(0)")
for (d, p) in ((8, 4), (12, 6), (16, 36), (20, 38)):
    A.e("s_mov_b32 s%d, s%d" % (d, p))
    A.e("s_and_b32 s%d, s%d, 0xffff" % (d + 1, p + 1))
    A.e("s_mov_b32 s%d, 0x4000000" % (d + 2))
    A.e("s_mov_b32 s%d, 0x20000" % (d + 3))
A.e("s_mov_b32 s35, s46")
A.e("s_mov_b32 s36, s47")
emit_seq(dma_k(0))
emit_seq(dma_q("Q1", S_QOFF, 0, 0, ('stg', 0)) + dma_q("Q1", S_QOFF, 0, 1, ('stg', 4096)) +
         dma_q("Q1", S_QOFF, 0, 2, ('slot', 32768)) + dma_q("Q1", S_QOFF, 0, 3, ('slot', 49152)))
for p in range(4):
    emit_seq(dma_q("Q2", S_QOFF, 1, p, ('slot', 65536 + p * 16384)))
emit_seq(dma_k(1))
A.wait_vm(["Q1"])
q_delta([(S_STG, 0), (S_STG, 4096), (S_LDSW, 32768), (S_LDSW, 49152)])
for f in q_reads(0): f()
A.wait_vm(["Q2"])
q_delta([(S_LDSW, 65536 + p * 16384) for p in range(4)])
for f in q_reads(1): f()
A.wait_ds(["Q"])
emit_seq(dma_v(0)); emit_seq(dma_k(2))
emit_seq(dma_v(1)); emit_seq(dma_k(3))
A.e("s_barrier")
stamp()
unit(0)
unit(1)
if STAMPS:
    A.e("s_waitcnt vmcnt(0)")
    stamp()
    n = nstamp[0]
    A.e("s_mov_b32 s8, s48")
    A.e("s_and_b32 s9, s49, 0xffff")
    if DBG:
        A.e("s_mov_b32 s10, 256")
        A.e("s_mov_b32 s11, 0x20000")
        A.e("s_cmp_lg_u32 s2, 77")
        A.e("s_cbranch_scc1 L_end")
        A.e("s_cmp_lg_u32 s%d, 0" % S_WAVE)
        A.e("s_cbranch_scc1 L_end")
        A.e("v_mov_b32 v1, 0")
        for i in range(1, n // 2):
            A.e("s_sub_u32 s32, s%d, s50" % (50 + 4 * i))
            A.e("v_mov_b32 v2, s32")
            A.e("buffer_store_dword v2, v1, s[8:11], 0 offen offset:%d" % (4 * (i - 1)))
            A.e("s_nop 1")
        A.e("s_sub_u32 s32, s%d, s52" % (52 + 4 * (n // 2 - 1)))
        A.e("v_mov_b32 v2, s32")
        A.e("buffer_store_dword v2, v1, s[8:11], 0 offen offset:%d" % (4 * (n // 2 - 1)))
    else:
      A.e("s_mov_b32 s10, 0x1000000")
      A.e("s_mov_b32 s11, 0x20000")
      A.e("s_lshl_b32 s32, s2, 2")
      A.e("s_add_u32 s32, s32, s%d" % S_WAVE)
      A.e("s_mul_i32 s32, s32, %d" % (n * 8))
      A.e("v_mov_b32 v1, 0")
      for i in range(n):
        A.e("v_mov_b32 v2, s%d" % (50 + 2 * i))
        A.e("v_mov_b32 v3, s%d" % (51 + 2 * i))
        A.e("buffer_store_dwordx2 v[2:3], v1, s[8:11], s32 offen offset:%d" % (8 * i))
        A.e("s_nop 1")
    print("nstamps", n)
A.label("L_end")
A.e("s_endpgm")
slow_block(0)
slow_block(1)

body = "\n".join(A.lines)
text = "\n".join(head) + """
.amdgcn_target "amdgcn-amd-amdhsa--gfx950"
.text
.globl %s
.p2align 8
.type %s,@function
%s:
%s
.section .rodata,"a"
.p2align 6
.amdhsa_kernel %s
  .amdhsa_next_free_vgpr 512
  .amdhsa_next_free_sgpr 102
  .amdhsa_accum_offset 256
  .amdhsa_group_segment_fixed_size 0
  .amdhsa_kernarg_size 48
  .amdhsa_user_sgpr_count 2
  .amdhsa_user_sgpr_kernarg_segment_ptr 1
  .amdhsa_system_sgpr_workgroup_id_x 1
.end_amdhsa_kernel
""" % (NAME, NAME, NAME, body, NAME)
open(OUT, "w").write(text)
print("wrote", OUT, len(A.lines), "lines", len(text), "bytes")
```

```python
import sys, struct, os

OUT = sys.argv[1] if len(sys.argv) > 1 else "standalone__gqa_softmax__near_ridge.s"
STAMPS = len(sys.argv) > 2 and sys.argv[2] in ("stamps", "dbg")
DBG = len(sys.argv) > 2 and sys.argv[2] == "dbg"
NAME = "standalone__gqa_softmax__near_ridge_kernel"
NT = os.environ.get("NT", "nt")
NTO = os.environ.get("NTO", "")
BUDGET = float(os.environ.get("BUDGET", "5.0"))

def f32hex(x):
    return "0x%08x" % struct.unpack("<I", struct.pack("<f", x))[0]

C_SCALE = 0.0625 * 1.4426950408889634

V_OFFK = 0
V_OFFV = 4
V_ADK = 6
V_ADV = 14
V_MC = 18
V_L = 20
V_MX = 22
V_RA = 23
V_INV = 24
V_OST = 26
V_T = 27
V_S = 32
A_Q = 0
A_KF = 128
A_VF = 144

S_KOFF, S_VOFF, S_LDSW, S_CNT, S_C, S_QOFF, S_WAVE, S_QN, S_T0, S_T1, S_STG, S_T2 = 24, 25, 26, 27, 28, 29, 30, 31, 32, 33, 34, 37
S_RET = 40
STG = 131072

def Sreg(buf, qb, r=0): return V_S + 32 * buf + 16 * qb + r
def vr(a, n): return "v[%d:%d]" % (a, a + n - 1)
def ar(a, n): return "a[%d:%d]" % (a, a + n - 1)
def Qop(qb, s): return ar(A_Q + 64 * qb + 4 * s, 4)
def Oloc(db, qb):
    n = db * 2 + qb
    return ("v", 96 + 16 * n) if n < 10 else ("a", 160 + 16 * (n - 10))
def Oop(db, qb):
    k, b = Oloc(db, qb)
    return "%s[%d:%d]" % (k, b, b + 15)

class Asm:
    def __init__(self):
        self.lines = []
        self.lds = []
        self.vm = []
    def e(self, s):
        self.lines.append("    " + s)
    def label(self, s):
        self.lines.append(s + ":")
    def ds(self, tag, s):
        self.e(s); self.lds.append(tag)
    def vmem(self, tag, s):
        self.e(s); self.vm.append(tag)
    def wait_ds(self, tags, force=False):
        if not isinstance(tags, list): tags = [tags]
        idx = [i for i, t in enumerate(self.lds) if t in tags]
        if not idx:
            if not force: return
            n = min(len(self.lds), 15)
        else:
            n = len(self.lds) - 1 - idx[-1]
        n = min(n, 15)
        self.e("s_waitcnt lgkmcnt(%d)" % n)
        self.lds = self.lds[len(self.lds) - n:] if n else []
    def wait_ds_all(self):
        self.e("s_waitcnt lgkmcnt(0)"); self.lds = []
    def wait_vm(self, tags, force=True):
        idx = [i for i, t in enumerate(self.vm) if t in tags]
        if not idx:
            if not force: return
            n = len(self.vm)
        else:
            n = len(self.vm) - 1 - idx[-1]
        n = min(n, 63)
        self.e("s_waitcnt vmcnt(%d)" % n)
        self.vm = self.vm[len(self.vm) - n:] if n else []

A = Asm()
nstamp = [0]
def stamp():
    if not STAMPS: return
    i = nstamp[0]; nstamp[0] += 2
    A.e("s_memrealtime s[%d:%d]" % (50 + 2 * i, 51 + 2 * i))
    A.e("s_memtime s[%d:%d]" % (52 + 2 * i, 53 + 2 * i))
    A.e("s_waitcnt lgkmcnt(0)")
    A.lds = []

site_cnt = [0]

def kslot(T):
    u, t = T // 16, T % 16
    return (t + 2 * u) % 4
def vslot(T):
    return T % 4

def kread(T, s):
    e_, f = s // 8, s % 8
    A.ds(("K", s), "ds_read_b128 %s, v%d offset:%d" % (ar(A_KF + 4 * (s % 4), 4), V_ADK + f, kslot(T) * 16384 + e_ * 256))

def vread(T, pos, ks, db, t):
    e_, f = db // 4, db % 4
    A.ds(("V", pos), "ds_read_b64_tr_b16 %s, v%d offset:%d" % (
        ar(A_VF + 4 * (pos % 4) + 2 * t, 2), V_ADV + f, vslot(T) * 16384 + ks * 8192 + t * 4096 + e_ * 256))

def pv_order(dbmajor):
    if dbmajor:
        return [(ks, db) for db in range(8) for ks in range(2)]
    return [(ks, db) for ks in range(2) for db in range(8)]

def dma_k(T):
    out = []
    if T == 16:
        out.append(lambda: A.e("s_add_u32 s%d, s%d, 0x%x" % (S_KOFF, S_KOFF, 127 * 262144)))
    out.append(lambda: A.e("s_add_u32 m0, s%d, 0x%x" % (S_LDSW, kslot(T) * 16384)))
    for k in range(4):
        def f(k=k):
            A.vmem(("K", T), "buffer_load_dwordx4 v%d, s[12:15], s%d offen offset:%d %s lds" % (V_OFFK + k, S_KOFF, k * 1024, NT))
        out.append(f)
    out.append(lambda: A.e("s_add_u32 s%d, s%d, 0x4000" % (S_KOFF, S_KOFF)))
    return out

def dma_v(T):
    out = []
    if T == 16:
        out.append(lambda: A.e("s_add_u32 s%d, s%d, 0x%x" % (S_VOFF, S_VOFF, 127 * 262144)))
    out.append(lambda: A.e("s_add_u32 m0, s%d, 0x%x" % (S_LDSW, 65536 + vslot(T) * 16384)))
    for k in range(4):
        def f(k=k):
            A.vmem(("V", T), "buffer_load_dwordx4 v%d, s[16:19], s%d offen offset:%d %s lds" % (V_OFFV + (k % 2), S_VOFF, k * 1024, NT))
        out.append(f)
    out.append(lambda: A.e("s_add_u32 s%d, s%d, 0x4000" % (S_VOFF, S_VOFF)))
    return out

def dma_q(tag, sq, qb, p, dest):
    out = []
    def pre():
        A.e("s_add_u32 s%d, s%d, 0x%x" % (S_T2, sq, qb * 16384 + p * 4096))
        if dest[0] == 'stg':
            A.e("s_add_u32 m0, s%d, 0x%x" % (S_STG, dest[1]))
        else:
            A.e("s_add_u32 m0, s%d, 0x%x" % (S_LDSW, dest[1]))
    out.append(pre)
    for k in range(4):
        def f(k=k):
            A.e("v_xor_b32 v%d, s%d, v%d" % (V_T + 4, 35 + (p % 2), V_OFFK + k))
            A.vmem(tag, "buffer_load_dwordx4 v%d, s[8:11], s%d offen offset:%d %s lds" % (V_T + 4, S_T2, k * 1024, NT))
        out.append(f)
    return out

def emit_seq(seq):
    for f in seq:
        f()
        A.e("s_nop 0")

def lane_id(dst):
    A.e("v_mbcnt_lo_u32_b32 v%d, -1, 0" % dst)
    A.e("v_mbcnt_hi_u32_b32 v%d, -1, v%d" % (dst, dst))

def q_delta(bases):
    d = V_T + 3
    t = V_T + 2
    lane_id(t)
    A.e("v_bfe_u32 v%d, v%d, 3, 2" % (t, t))
    for p in range(4):
        sg, c = bases[p]
        A.e("s_add_u32 s%d, s%d, 0x%x" % (S_T0, sg, (c - p * 4096) & 0xffffffff))
        if p == 0:
            A.e("v_mov_b32 v%d, s%d" % (d, S_T0))
        else:
            A.e("v_cmp_eq_u32 vcc, %d, v%d" % (p, t))
            A.e("v_mov_b32 v%d, s%d" % (V_T + 1, S_T0))
            A.e("s_nop 0")
            A.e("v_cndmask_b32 v%d, v%d, v%d, vcc" % (d, d, V_T + 1))

def q_reads(qb, bases):
    out = [(12, lambda: q_delta(bases))]
    for s in range(16):
        def f(s=s):
            e_, ff = s // 8, s % 8
            A.e("v_add_u32 v%d, v%d, v%d" % (V_T + 2, V_ADK + ff, V_T + 3))
            A.ds("Q", "ds_read_b128 %s, v%d offset:%d" % (Qop(qb, s), V_T + 2, e_ * 256))
        out.append((2, f))
    return out

def softmaxB_stream(buf):
    st = []
    for ks in range(2):
        for qb in range(2):
            for i in range(4):
                r0 = Sreg(buf, qb, 8 * ks + 2 * i)
                dst = Sreg(buf, qb, 8 * ks + i)
                st.append((2, "v_exp_f32 v%d, v%d" % (r0, r0)))
                st.append((2, "v_exp_f32 v%d, v%d" % (r0 + 1, r0 + 1)))
                st.append((1, "v_add_f32 v%d, v%d, v%d" % (V_L + qb, V_L + qb, r0)))
                st.append((1, "v_add_f32 v%d, v%d, v%d" % (V_L + qb, V_L + qb, r0 + 1)))
                st.append((1, "v_cvt_pk_bf16_f32 v%d, v%d, v%d" % (dst, r0, r0 + 1)))
    return st

def softmaxA_stream(buf):
    ops = []
    xs = []
    for qb in range(2):
        for r in range(16):
            x = Sreg(buf, qb, r)
            ops.append("v_fma_f32 v%d, v%d, s%d, -v%d" % (x, x, S_C, V_MC + qb))
            xs.append(x)
    mx = [(2, "v_max3_f32 v%d, v%d, v%d, v%d" % (V_MX, xs[0], xs[1], xs[2]))]
    i = 3
    while i < 32:
        a = xs[i]; b = xs[i + 1] if i + 1 < 32 else xs[i]
        mx.append((min(i + 1, 31), "v_max3_f32 v%d, v%d, v%d, v%d" % (V_MX, V_MX, a, b)))
        i += 2
    res = []
    mi = 0
    for k, o in enumerate(ops):
        res.append((1, o))
        while mi < len(mx) and mx[mi][0] <= k - 1:
            res.append((1, mx[mi][1])); mi += 1
    while mi < len(mx):
        res.append((1, mx[mi][1])); mi += 1
    return res

def init_stream(buf):
    st = []
    t, t2 = V_MX, V_T + 1
    for qb in range(2):
        xs = [Sreg(buf, qb, r) for r in range(16)]
        for x in xs:
            st.append((1, "v_mul_f32 v%d, s%d, v%d" % (x, S_C, x)))
        st.append((1, "v_max3_f32 v%d, v%d, v%d, v%d" % (t, xs[0], xs[1], xs[2])))
        for i in range(3, 15, 2):
            st.append((1, "v_max3_f32 v%d, v%d, v%d, v%d" % (t, t, xs[i], xs[i + 1])))
        def fin(qb=qb, xs=xs):
            A.e("v_max_f32 v%d, v%d, v%d" % (t, t, xs[15]))
            A.e("v_mov_b32 v%d, v%d" % (t2, t))
            A.e("s_nop 1")
            A.e("v_permlane32_swap_b32 v%d, v%d" % (t, t2))
            A.e("s_nop 1")
            A.e("v_max_f32 v%d, v%d, v%d" % (V_MC + qb, t, t2))
            A.e("v_mov_b32 v%d, 0" % (V_L + qb))
        st.append((9, fin))
        for x in xs:
            st.append((1, "v_sub_f32 v%d, v%d, v%d" % (x, x, V_MC + qb)))
    return st

class Stream:
    def __init__(self, items, earliest=0, maxper=99):
        self.items = [(it[0], it[1], (it[2] if len(it) > 2 else earliest)) for it in items]
        self.maxper = maxper
    def __bool__(self): return bool(self.items)

class Filler:
    def __init__(self):
        self.credit = 0.0
        self.g = 0
    def gap(self, used_fixed, streams):
        self.credit += BUDGET - used_fixed
        cnt = {}
        progress = True
        while progress:
            progress = False
            for st in streams:
                if st.items and (st.items[0][2]() if callable(st.items[0][2]) else st.items[0][2] <= self.g) and cnt.get(id(st), 0) < st.maxper and \
                   (st.items[0][0] <= self.credit + 1e-9 or (st.items[0][0] > BUDGET and self.credit > 0)):
                    c, it, _ = st.items.pop(0)
                    if callable(it): it()
                    else: A.e(it)
                    self.credit -= c
                    cnt[id(st)] = cnt.get(id(st), 0) + 1
                    progress = True
                    break
        if self.credit > BUDGET: self.credit = BUDGET
        self.g += 1

def flush(streams, nop_between=False):
    for st in streams:
        while st.items:
            c, it, _ = st.items.pop(0)
            if st.maxper == 1: A.e("s_nop 0")
            if callable(it): it()
            else: A.e(it)

def dmastream(seq, earliest=0):
    return Stream([(1, f) for f in seq], earliest, maxper=1)

def qk_group(F, Tk, buf, streams, vpre=None, bar=None, kpre=None):
    for m in range(32):
        s, qb = m // 2, m % 2
        if qb == 0:
            A.wait_ds(("K", s), force=True)
        c = "0" if s == 0 else vr(Sreg(buf, qb), 16)
        A.e("v_mfma_f32_32x32x16_bf16 %s, %s, %s, %s" % (vr(Sreg(buf, qb), 16), ar(A_KF + 4 * (s % 4), 4), Qop(qb, s), c))
        used = 0
        if qb == 1:
            used += 1
            if s + 4 < 16:
                kread(Tk, s + 4); used += 1
        if vpre and m >= 24:
            pos = (m - 24) // 2
            ks, db = vpre[1][pos]
            vread(vpre[0], pos, ks, db, (m - 24) % 2); used += 1
        if bar and m == bar[0]:
            bar[1](); used += 2
        if kpre is not None:
            for s2 in {28: [0, 1], 30: [2], 31: [3]}.get(m, []):
                kread(kpre, s2); used += 1
        F.gap(used, streams)

def pv_group(F, T, order, streams, bar=None, kpre=None, first=False):
    cb = T % 2
    for m in range(32):
        pos, qb = m // 2, m % 2
        ks, db = order[pos]
        if qb == 0:
            A.wait_ds(("V", pos), force=True)
        c = "0" if (first and ks == 0) else Oop(db, qb)
        A.e("v_mfma_f32_32x32x16_bf16 %s, %s, %s, %s" % (Oop(db, qb), ar(A_VF + 4 * (pos % 4), 4), vr(Sreg(cb, qb, 8 * ks), 4), c))
        used = 0
        if qb == 1:
            used += 1
            if pos + 4 < 16:
                k2, d2 = order[pos + 4]
                vread(T, pos + 4, k2, d2, 0); vread(T, pos + 4, k2, d2, 1); used += 2
        if bar and m == bar[0]:
            bar[1](); used += 2
        if kpre is not None and m >= 28:
            kread(kpre, m - 28); used += 1
        F.gap(used, streams)

def check_slow(nb):
    site = site_cnt[0]; site_cnt[0] += 1
    A.e("v_cmp_lt_f32 vcc, 0x41000000, v%d" % V_MX)
    A.e("s_cbranch_vccz L_back_%d" % site)
    A.e("s_call_b64 s[%d:%d], L_slow_%d" % (S_RET, S_RET + 1, nb))
    A.label("L_back_%d" % site)

def slow_block(buf):
    A.label("L_slow_%d" % buf)
    A.e("s_nop 15")
    t, t2, al = V_T, V_T + 1, V_T + 2
    for qb in range(2):
        xs = [Sreg(buf, qb, r) for r in range(16)]
        A.e("v_max3_f32 v%d, v%d, v%d, v%d" % (t, xs[0], xs[1], xs[2]))
        for i in range(3, 15, 2):
            A.e("v_max3_f32 v%d, v%d, v%d, v%d" % (t, t, xs[i], xs[i + 1]))
        A.e("v_max_f32 v%d, v%d, v%d" % (t, t, xs[15]))
        A.e("v_mov_b32 v%d, v%d" % (t2, t))
        A.e("s_nop 1")
        A.e("v_permlane32_swap_b32 v%d, v%d" % (t, t2))
        A.e("s_nop 1")
        A.e("v_max3_f32 v%d, v%d, v%d, 0" % (t, t, t2))
        A.e("v_exp_f32 v%d, -v%d" % (al, t))
        A.e("v_add_f32 v%d, v%d, v%d" % (V_MC + qb, V_MC + qb, t))
        for x in xs:
            A.e("v_sub_f32 v%d, v%d, v%d" % (x, x, t))
        A.e("v_mul_f32 v%d, v%d, v%d" % (V_L + qb, V_L + qb, al))
        for db in range(8):
            k, b = Oloc(db, qb)
            for r in range(16):
                if k == "v":
                    A.e("v_mul_f32 v%d, v%d, v%d" % (b + r, b + r, al))
                else:
                    tt = V_T + (r % 2)
                    A.e("v_accvgpr_read_b32 v%d, a%d" % (tt, b + r))
                    A.e("v_mul_f32 v%d, v%d, v%d" % (tt, tt, al))
                    A.e("v_accvgpr_write_b32 a%d, v%d" % (b + r, tt))
    A.e("s_nop 1")
    A.e("s_setpc_b64 s[%d:%d]" % (S_RET, S_RET + 1))

def epilogue_stream(sq, gate):
    st = []
    WA = Oloc(0, 0)[1] + 8
    RD = [Oloc(1, 0)[1], Oloc(1, 1)[1]]
    AT = Oloc(0, 1)[1]
    def inv():
        for qb in range(2):
            A.e("v_mov_b32 v%d, v%d" % (V_T, V_L + qb))
            A.e("s_nop 1")
            A.e("v_permlane32_swap_b32 v%d, v%d" % (V_L + qb, V_T))
            A.e("s_nop 1")
            A.e("v_add_f32 v%d, v%d, v%d" % (V_T, V_T, V_L + qb))
            A.e("v_rcp_f32 v%d, v%d" % (V_INV + qb, V_T))
    st.append((14, inv, 0))
    def addr1():
        lane_id(V_T + 1)
        A.e("v_lshrrev_b32 v%d, 3, v%d" % (V_T, V_T + 1))
        A.e("v_and_b32 v%d, 7, v%d" % (V_T + 1, V_T + 1))
        A.e("v_lshlrev_b32 v%d, 9, v%d" % (V_RA, V_T))
        A.e("v_lshl_add_u32 v%d, v%d, 4, v%d" % (V_OST, V_T + 1, V_RA))
        A.e("v_xor_b32 v%d, v%d, v%d" % (V_T + 1, V_T + 1, V_T))
        A.e("v_lshlrev_b32 v%d, 7, v%d" % (V_T, V_T))
        A.e("v_lshl_add_u32 v%d, v%d, 4, v%d" % (V_T, V_T + 1, V_T))
        A.e("v_add_u32 v%d, s%d, v%d" % (V_RA, S_STG, V_T))
    st.append((10, addr1, 0))
    def addr2():
        lane_id(WA + 7)
        A.e("v_and_b32 v%d, 31, v%d" % (V_T, WA + 7))
        A.e("v_lshrrev_b32 v%d, 5, v%d" % (V_T + 1, WA + 7))
        A.e("v_lshlrev_b32 v%d, 7, v%d" % (WA + 7, V_T))
        A.e("v_lshl_add_u32 v%d, v%d, 3, v%d" % (WA + 7, V_T + 1, WA + 7))
        A.e("v_add_u32 v%d, s%d, v%d" % (WA + 7, S_STG, WA + 7))
        A.e("v_and_b32 v%d, 7, v%d" % (V_T, V_T))
        for c in range(8):
            A.e("v_xor_b32 v%d, %d, v%d" % (V_T + 1, c, V_T))
            A.e("v_lshl_add_u32 v%d, v%d, 4, v%d" % (WA + c, V_T + 1, WA + 7))
    def rdback(b):
        half = b % 2
        def f():
            A.wait_ds([("W", b)])
            for k in range(4):
                A.ds(("R", b), "ds_read_b128 %s, v%d offset:%d" % (vr(RD[half] + 4 * k, 4), V_RA, half * 4096 + k * 1024))
        return (5, f)
    def store(b):
        dp, qb = b // 2, b % 2
        half = b % 2
        out = []
        for k in range(4):
            def f(k=k):
                A.e("s_add_u32 s%d, s%d, 0x%x" % (S_T0, sq, qb * 16384 + dp * 128 + k * 4096))
                if k == 0: A.wait_ds([("R", b)])
                A.vmem("O", "buffer_store_dwordx4 %s, v%d, s[20:23], s%d offen offset:0 %s" % (vr(RD[half] + 4 * k, 4), V_OST, S_T0, NTO))
            out.append((3, f))
        return out
    for b in range(8):
        dp, qb = b // 2, b % 2
        half = b % 2
        ready = 8 * dp + 7 + 4
        for dd in range(2):
            db = 2 * dp + dd
            k, ob = Oloc(db, qb)
            if k == "a":
                for r in range(16):
                    st.append((1, "v_accvgpr_read_b32 v%d, a%d" % (AT + r, ob + r), ready))
                base = AT
            else:
                base = ob
            for z in range(16):
                st.append((1, "v_mul_f32 v%d, v%d, v%d" % (base + z, base + z, V_INV + qb), ready))
            for z in range(8):
                st.append((1, "v_cvt_pk_bf16_f32 v%d, v%d, v%d" % (base + z, base + 2 * z, base + 2 * z + 1), ready))
            if b == 0 and dd == 0:
                st.append((24, addr2, ready))
            for z in range(4):
                def w(z=z, base=base, dd=dd, b=b, half=half):
                    A.ds(("W", b), "ds_write_b64 v%d, %s offset:%d" % (WA + 4 * dd + z, vr(base + 2 * z, 2), half * 4096))
                st.append((1, w, gate if gate else ready))
            if dd == 0 and b >= 1:
                st += store(b - 1)
        st.append(rdback(b))
    st += store(7)
    return Stream(st)

def shift_tags(q, d):
    return [(t[0], t[1] + d) if isinstance(t, tuple) and t[0] in ("K", "V") else t for t in q]

BASES_B = [(S_STG, 0), (S_STG, 4096), (S_LDSW, 0), (S_LDSW, 16384)]
ORD_N = pv_order(False)
ORD_D = pv_order(True)

def mkbar(need, full_lds=False):
    def f():
        if full_lds: A.wait_ds_all()
        A.wait_vm(need)
        A.e("s_barrier")
    return f

def phase2(u, j):
    T = 16 * u + j
    last_unit = (u == 1)
    pre, post = [], []
    need = []
    if j + 2 <= 15: need.append(("K", T + 2))
    if j + 1 <= 15: need.append(("V", T + 1))
    if j + 3 <= 15: post += dma_v(T + 3)
    if j + 5 <= 15: post += dma_k(T + 5)
    BAR = 10
    if not last_unit:
        if j == 10:
            post += dma_q("Q1", S_QN, 0, 0, ('stg', 0))
        if j == 11:
            post += dma_q("Q1", S_QN, 0, 1, ('stg', 4096)) + dma_q("Q1", S_QN, 0, 2, ('slot', 0))
        if j == 12:
            post += dma_q("Q1", S_QN, 0, 3, ('slot', 16384))
        if j == 13:
            post += dma_v(16) + dma_k(16)
        if j == 14:
            pre = [(1, lambda: A.wait_vm(["Q1"]))] + q_reads(0, BASES_B)
            post += [lambda: A.wait_ds(["Q"])]
            post += dma_q("Q2", S_QN, 1, 0, ('stg', 0)) + dma_q("Q2", S_QN, 1, 1, ('stg', 4096))
            post += dma_q("Q2", S_QN, 1, 2, ('slot', 0)) + dma_q("Q2", S_QN, 1, 3, ('slot', 16384))
    F = Filler()
    spre = Stream(pre)
    def bar():
        flush([spre])
        mkbar(need)()
    streams = [dmastream(post, BAR + 1), spre, Stream(softmaxA_stream((T + 1) % 2), 6)]
    pv_group(F, T, ORD_N, streams, bar=(BAR, bar), kpre=(T + 2 if j + 2 <= 15 else None), first=(j == 0))
    flush(streams)
    check_slow((T + 1) % 2)

def phase1(u, j):
    T = 16 * u + j
    F = Filler()
    streams = [Stream(softmaxB_stream(T % 2))]
    qk_group(F, T + 1, (T + 1) % 2, streams, vpre=(T, ORD_N))
    flush(streams)

def iteration(u, j):
    phase1(u, j)
    phase2(u, j)

def gen_loop(u):
    start = len(A.lines)
    site0 = site_cnt[0]
    for j in range(1, 5): iteration(u, j)
    text1 = A.lines[start:]
    vm1, lds1 = list(A.vm), list(A.lds)
    del A.lines[start:]
    A.vm = shift_tags(vm1, -4); A.lds = list(lds1); site_cnt[0] = site0
    for j in range(1, 5): iteration(u, j)
    text2 = A.lines[start:]
    assert A.vm == vm1 and A.lds == lds1, "loop not steady"
    assert len(text1) == len(text2)
    merged = []
    for a, b in zip(text1, text2):
        if a != b:
            assert a.strip().startswith("s_waitcnt") and b.strip().startswith("s_waitcnt"), (a, b)
            na = int(a[a.index("(") + 1:a.index(")")]); nb = int(b[b.index("(") + 1:b.index(")")])
            merged.append(a if na <= nb else b)
        else:
            merged.append(a)
    del A.lines[start:]
    A.e("s_mov_b32 s%d, 0" % S_CNT)
    A.label("L_loop_%d" % u)
    A.lines += merged
    A.e("s_add_u32 s%d, s%d, 1" % (S_CNT, S_CNT))
    A.e("s_cmp_lt_u32 s%d, 2" % S_CNT)
    A.e("s_cbranch_scc1 L_loop_%d" % u)
    A.vm = shift_tags(A.vm, 4)

def head_of_unit(u, F, estream, extra_dma):
    T0 = 16 * u
    g0 = F.g
    streams = []
    d1 = dmastream(extra_dma, g0)
    streams.append(d1)
    if estream: streams.append(estream)
    qk_group(F, T0, 0, streams, bar=(27, mkbar([("K", T0 + 1)], full_lds=True)), kpre=T0 + 1)
    g1 = F.g
    post = (dma_v(2) if u == 0 else []) + dma_k(T0 + 4)
    sm = Stream(init_stream(0) + softmaxB_stream(0), g1 + 3)
    d1.items += dmastream(post, g1).items
    streams = [d1, sm]
    if estream: streams.append(estream)
    qk_group(F, T0 + 1, 1, streams, vpre=(T0, ORD_N), bar=(22, mkbar([("V", T0)])))
    flush(streams)
    A.e("s_nop 1")

def tail_of_unit(u):
    T = 16 * u + 15
    last = (u == 1)
    for pos in range(4):
        ks, db = ORD_D[pos]
        vread(T, pos, ks, db, 0); vread(T, pos, ks, db, 1)
    sm = Stream(softmaxB_stream(1))
    extra = [] if last else (dma_v(17) + dma_k(17))
    k = 0
    while sm.items:
        c, it, _ = sm.items.pop(0); A.e(it); k += 1
        if extra and k % 6 == 0:
            extra.pop(0)()
    emit_seq(extra)
    A.e("s_nop 1")
    F = Filler()
    if last:
        E = epilogue_stream(S_QOFF, None)
        pv_group(F, T, ORD_D, [E])
        A.e("s_nop 15")
        flush([E])
        return
    QAT = 20
    qs = Stream([(1, lambda: A.wait_vm(["Q2"]))] + q_reads(1, BASES_B) + [(1, lambda: A.wait_ds(["Q"]))], QAT)
    E = epilogue_stream(S_QOFF, lambda: not qs.items)
    streams = [dmastream(dma_v(18), 11), qs, E]
    pv_group(F, T, ORD_D, streams, bar=(10, mkbar([("K", 16)])), kpre=16)
    flush([streams[0], qs])
    stamp()
    head_of_unit(1, F, E, dma_k(18) + dma_k(19))
    A.e("s_mov_b32 s%d, s%d" % (S_QOFF, S_QN))

def unit_body(u):
    stamp()
    phase2(u, 0)
    gen_loop(u)
    for j in range(9, 15):
        iteration(u, j)
    stamp()
    tail_of_unit(u)

hdr = open("standalone__gqa_softmax__near_ridge.s.ref").read().split("\n")
head = []
for l in hdr:
    if l.startswith("; @launch"):
        head.append("; @launch grid=(256,1,1) block=(256,1,1) lds=163840")
    elif l.startswith(";"):
        head.append(l)
    else:
        break

A.e("s_cmp_ge_u32 s2, 256")
A.e("s_cbranch_scc1 L_end")
A.e("s_load_dwordx4 s[4:7], s[0:1], 0")
A.e("s_load_dwordx4 s[36:39], s[0:1], 16")
if STAMPS:
    A.e("s_load_dwordx2 s[48:49], s[0:1], %d" % (32 if DBG else 40))
stamp()
A.e("s_and_b32 s42, s2, 7")
A.e("s_lshr_b32 s43, s2, 3")
A.e("s_and_b32 s44, s43, 1")
A.e("s_lshr_b32 s43, s43, 1")
A.e("s_lshl_b32 s42, s42, 4")
A.e("s_add_u32 s42, s42, s43")
A.e("s_lshl_b32 s45, s42, 1")
A.e("s_add_u32 s45, s45, s44")
A.e("v_lshrrev_b32 v33, 6, v0")
A.e("v_and_b32 v32, 63, v0")
A.e("s_nop 0")
A.e("v_readfirstlane_b32 s%d, v33" % S_WAVE)
A.e("s_mov_b32 s%d, %s" % (S_C, f32hex(C_SCALE)))
A.e("s_nop 2")
A.e("s_lshl_b32 s%d, s%d, 12" % (S_LDSW, S_WAVE))
A.e("s_lshl_b32 s%d, s%d, 13" % (S_STG, S_WAVE))
A.e("s_add_u32 s%d, s%d, 0x%x" % (S_STG, S_STG, STG))
A.e("s_lshl_b32 s%d, s42, 18" % S_KOFF)
A.e("s_add_u32 s%d, s%d, s%d" % (S_KOFF, S_KOFF, S_LDSW))
A.e("s_mov_b32 s%d, s%d" % (S_VOFF, S_KOFF))
A.e("s_lshl_b32 s%d, s45, 17" % S_QOFF)
A.e("s_lshl_b32 s43, s%d, 15" % S_WAVE)
A.e("s_add_u32 s%d, s%d, s43" % (S_QOFF, S_QOFF))
A.e("s_add_u32 s%d, s%d, 0x2000000" % (S_QN, S_QOFF))
A.e("s_and_b32 s46, s%d, 1" % S_WAVE)
A.e("s_lshl_b32 s46, s46, 7")
A.e("s_xor_b32 s47, s46, 0x80")
A.e("v_and_b32 v33, 31, v32")
A.e("v_lshrrev_b32 v34, 5, v32")
A.e("v_lshlrev_b32 v35, 9, v33")
A.e("v_and_b32 v36, 15, v33")
A.e("v_xor_b32 v36, v36, v34")
for f in range(8):
    A.e("v_xor_b32 v37, %d, v36" % (2 * f))
    A.e("v_lshl_add_u32 v%d, v37, 4, v35" % (V_ADK + f))
A.e("s_and_b32 s43, s%d, 1" % S_WAVE)
A.e("s_lshl_b32 s43, s43, 3")
A.e("v_lshlrev_b32 v35, 9, v34")
A.e("v_xor_b32 v36, v33, v34")
A.e("v_xor_b32 v36, s43, v36")
for k in range(4):
    A.e("v_xor_b32 v37, %d, v36" % (2 * k))
    A.e("v_lshl_add_u32 v%d, v37, 4, v35" % (V_OFFK + k))
A.e("v_lshlrev_b32 v36, 2, v34")
A.e("v_xor_b32 v36, v33, v36")
for k2 in range(2):
    A.e("v_xor_b32 v37, %d, v36" % (8 * k2))
    A.e("v_lshl_add_u32 v%d, v37, 4, v35" % (V_OFFV + k2))
A.e("v_bfe_u32 v35, v32, 2, 2")
A.e("v_lshl_add_u32 v36, v34, 2, v35")
A.e("v_lshlrev_b32 v36, 9, v36")
A.e("v_add_u32 v36, 0x10000, v36")
A.e("v_bfe_u32 v37, v32, 4, 1")
A.e("v_lshl_add_u32 v36, v37, 5, v36")
A.e("v_and_b32 v37, 3, v32")
A.e("v_lshl_add_u32 v36, v37, 3, v36")
for f in range(4):
    A.e("v_xor_b32 v37, %d, v35" % f)
    A.e("v_lshl_add_u32 v%d, v37, 6, v36" % (V_ADV + f))
A.e("s_waitcnt lgkmcnt(0)")
for (d, p) in ((8, 4), (12, 6), (16, 36), (20, 38)):
    A.e("s_mov_b32 s%d, s%d" % (d, p))
    A.e("s_and_b32 s%d, s%d, 0xffff" % (d + 1, p + 1))
    A.e("s_mov_b32 s%d, 0x4000000" % (d + 2))
    A.e("s_mov_b32 s%d, 0x20000" % (d + 3))
A.e("s_mov_b32 s35, s46")
A.e("s_mov_b32 s36, s47")
emit_seq(dma_k(0))
emit_seq(dma_q("Q1", S_QOFF, 0, 0, ('stg', 0)) + dma_q("Q1", S_QOFF, 0, 1, ('stg', 4096)) +
         dma_q("Q1", S_QOFF, 0, 2, ('slot', 32768)) + dma_q("Q1", S_QOFF, 0, 3, ('slot', 49152)))
for p in range(4):
    emit_seq(dma_q("Q2", S_QOFF, 1, p, ('slot', 65536 + p * 16384)))
emit_seq(dma_k(1))
A.wait_vm(["Q1"])
for c, f in q_reads(0, [(S_STG, 0), (S_STG, 4096), (S_LDSW, 32768), (S_LDSW, 49152)]): f()
A.wait_vm(["Q2"])
for c, f in q_reads(1, [(S_LDSW, 65536 + p * 16384) for p in range(4)]): f()
A.wait_ds(["Q"])
A.e("s_barrier")
stamp()
for s in range(4):
    kread(0, s)
F0 = Filler()
head_of_unit(0, F0, None, dma_v(0) + dma_k(2) + dma_v(1) + dma_k(3))
unit_body(0)
unit_body(1)
if STAMPS:
    stamp()
    A.e("s_waitcnt vmcnt(0)")
    stamp()
    n = nstamp[0]
    A.e("s_mov_b32 s8, s48")
    A.e("s_and_b32 s9, s49, 0xffff")
    if DBG:
        A.e("s_mov_b32 s10, 256")
        A.e("s_mov_b32 s11, 0x20000")
        A.e("s_cmp_lg_u32 s2, 77")
        A.e("s_cbranch_scc1 L_end")
        A.e("s_cmp_lg_u32 s%d, 0" % S_WAVE)
        A.e("s_cbranch_scc1 L_end")
        A.e("v_mov_b32 v1, 0")
        for i in range(1, n // 2):
            A.e("s_sub_u32 s32, s%d, s50" % (50 + 4 * i))
            A.e("v_mov_b32 v2, s32")
            A.e("buffer_store_dword v2, v1, s[8:11], 0 offen offset:%d" % (4 * (i - 1)))
            A.e("s_nop 1")
        A.e("s_sub_u32 s32, s%d, s52" % (52 + 4 * (n // 2 - 1)))
        A.e("v_mov_b32 v2, s32")
        A.e("buffer_store_dword v2, v1, s[8:11], 0 offen offset:%d" % (4 * (n // 2 - 1)))
    else:
        A.e("s_mov_b32 s10, 0x1000000")
        A.e("s_mov_b32 s11, 0x20000")
        A.e("s_lshl_b32 s32, s2, 2")
        A.e("s_add_u32 s32, s32, s%d" % S_WAVE)
        A.e("s_mul_i32 s32, s32, %d" % (n * 8))
        A.e("v_mov_b32 v1, 0")
        for i in range(n):
            A.e("v_mov_b32 v2, s%d" % (50 + 2 * i))
            A.e("v_mov_b32 v3, s%d" % (51 + 2 * i))
            A.e("buffer_store_dwordx2 v[2:3], v1, s[8:11], s32 offen offset:%d" % (8 * i))
            A.e("s_nop 1")
    print("nstamps", n)
A.label("L_end")
A.e("s_endpgm")
slow_block(0)
slow_block(1)

body = "\n".join(A.lines)
text = "\n".join(head) + """
.amdgcn_target "amdgcn-amd-amdhsa--gfx950"
.text
.globl %s
.p2align 8
.type %s,@function
%s:
%s
.section .rodata,"a"
.p2align 6
.amdhsa_kernel %s
  .amdhsa_next_free_vgpr 512
  .amdhsa_next_free_sgpr 102
  .amdhsa_accum_offset 256
  .amdhsa_group_segment_fixed_size 0
  .amdhsa_kernarg_size 48
  .amdhsa_user_sgpr_count 2
  .amdhsa_user_sgpr_kernarg_segment_ptr 1
  .amdhsa_system_sgpr_workgroup_id_x 1
.end_amdhsa_kernel
""" % (NAME, NAME, NAME, body, NAME)
open(OUT, "w").write(text)
print("wrote", OUT, len(A.lines), "lines", len(text), "bytes")
```

```python
import sys, struct, os

OUT = sys.argv[1] if len(sys.argv) > 1 else "standalone__gqa_softmax__near_ridge.s"
STAMPS = len(sys.argv) > 2 and sys.argv[2] in ("stamps", "dbg")
DBG = len(sys.argv) > 2 and sys.argv[2] == "dbg"
NAME = "standalone__gqa_softmax__near_ridge_kernel"
NT = os.environ.get("NT", "nt")
NTO = os.environ.get("NTO", "")
BUDGET = float(os.environ.get("BUDGET", "5.0"))

def f32hex(x):
    return "0x%08x" % struct.unpack("<I", struct.pack("<f", x))[0]

C_SCALE = 0.0625 * 1.4426950408889634

V_OFFK = 0
V_OFFV = 4
V_ADK = 6
V_ADV = 14
V_MC = 18
V_L = 20
V_MX = 22
V_RA = 23
V_INV = 24
V_OST = 26
V_T = 27
V_S = 32
A_Q = 0
A_KF = 128
A_VF = 144

S_KOFF, S_VOFF, S_LDSW, S_CNT, S_C, S_QOFF, S_WAVE, S_QN, S_T0, S_T1, S_STG, S_T2 = 24, 25, 26, 27, 28, 29, 30, 31, 32, 33, 34, 37
S_RET = 40
STG = 131072

def Sreg(buf, qb, r=0): return V_S + 32 * buf + 16 * qb + r
def vr(a, n): return "v[%d:%d]" % (a, a + n - 1)
def ar(a, n): return "a[%d:%d]" % (a, a + n - 1)
def Qop(qb, s): return ar(A_Q + 64 * qb + 4 * s, 4)
def Oloc(db, qb):
    n = db * 2 + qb
    return ("v", 96 + 16 * n) if n < 10 else ("a", 160 + 16 * (n - 10))
def Oop(db, qb):
    k, b = Oloc(db, qb)
    return "%s[%d:%d]" % (k, b, b + 15)

class Asm:
    def __init__(self):
        self.lines = []
        self.lds = []
        self.vm = []
    def e(self, s):
        self.lines.append("    " + s)
    def label(self, s):
        self.lines.append(s + ":")
    def ds(self, tag, s):
        self.e(s); self.lds.append(tag)
    def vmem(self, tag, s):
        self.e(s); self.vm.append(tag)
    def wait_ds(self, tags, force=False):
        if not isinstance(tags, list): tags = [tags]
        idx = [i for i, t in enumerate(self.lds) if t in tags]
        if not idx:
            if not force: return
            n = min(len(self.lds), 15)
        else:
            n = len(self.lds) - 1 - idx[-1]
        n = min(n, 15)
        self.e("s_waitcnt lgkmcnt(%d)" % n)
        self.lds = self.lds[len(self.lds) - n:] if n else []
    def wait_ds_all(self):
        self.e("s_waitcnt lgkmcnt(0)"); self.lds = []
    def wait_vm(self, tags, force=True):
        idx = [i for i, t in enumerate(self.vm) if t in tags]
        if not idx:
            if not force: return
            n = len(self.vm)
        else:
            n = len(self.vm) - 1 - idx[-1]
        n = min(n, 63)
        self.e("s_waitcnt vmcnt(%d)" % n)
        self.vm = self.vm[len(self.vm) - n:] if n else []

A = Asm()
nstamp = [0]
def stamp():
    if not STAMPS: return
    i = nstamp[0]; nstamp[0] += 2
    A.e("s_memrealtime s[%d:%d]" % (50 + 2 * i, 51 + 2 * i))
    A.e("s_memtime s[%d:%d]" % (52 + 2 * i, 53 + 2 * i))
    A.e("s_waitcnt lgkmcnt(0)")
    A.lds = []

site_cnt = [0]

def kslot(T):
    u, t = T // 16, T % 16
    return (t + 2 * u) % 4
def vslot(T):
    return T % 4

def kread(T, s):
    if os.environ.get("NOLDS") and T > 1: return
    e_, f = s // 8, s % 8
    A.ds(("K", s), "ds_read_b128 %s, v%d offset:%d" % (ar(A_KF + 4 * (s % 4), 4), V_ADK + f, kslot(T) * 16384 + e_ * 256))

def vread(T, pos, ks, db, t):
    if os.environ.get("NOLDS") and T > 0: return
    e_, f = db // 4, db % 4
    A.ds(("V", pos), "ds_read_b64_tr_b16 %s, v%d offset:%d" % (
        ar(A_VF + 4 * (pos % 4) + 2 * t, 2), V_ADV + f, vslot(T) * 16384 + ks * 8192 + t * 4096 + e_ * 256))

def pv_order(dbmajor):
    if dbmajor:
        return [(ks, db) for db in range(8) for ks in range(2)]
    return [(ks, db) for ks in range(2) for db in range(8)]

def dma_k(T):
    out = []
    if T == 16:
        out.append(lambda: A.e("s_add_u32 s%d, s%d, 0x%x" % (S_KOFF, S_KOFF, 127 * 262144)))
    out.append(lambda: A.e("s_add_u32 m0, s%d, 0x%x" % (S_LDSW, kslot(T) * 16384)))
    for k in range(4):
        def f(k=k):
            A.vmem(("K", T), "buffer_load_dwordx4 v%d, s[12:15], s%d offen offset:%d %s lds" % (V_OFFK + k, S_KOFF, k * 1024, NT))
        out.append(f)
    out.append(lambda: A.e("s_add_u32 s%d, s%d, 0x4000" % (S_KOFF, S_KOFF)))
    return out

def dma_v(T):
    out = []
    if T == 16:
        out.append(lambda: A.e("s_add_u32 s%d, s%d, 0x%x" % (S_VOFF, S_VOFF, 127 * 262144)))
    out.append(lambda: A.e("s_add_u32 m0, s%d, 0x%x" % (S_LDSW, 65536 + vslot(T) * 16384)))
    for k in range(4):
        def f(k=k):
            A.vmem(("V", T), "buffer_load_dwordx4 v%d, s[16:19], s%d offen offset:%d %s lds" % (V_OFFV + (k % 2), S_VOFF, k * 1024, NT))
        out.append(f)
    out.append(lambda: A.e("s_add_u32 s%d, s%d, 0x4000" % (S_VOFF, S_VOFF)))
    return out

def dma_q(tag, sq, qb, p, dest):
    out = []
    def pre():
        A.e("s_add_u32 s%d, s%d, 0x%x" % (S_T2, sq, qb * 16384 + p * 4096))
        if dest[0] == 'stg':
            A.e("s_add_u32 m0, s%d, 0x%x" % (S_STG, dest[1]))
        else:
            A.e("s_add_u32 m0, s%d, 0x%x" % (S_LDSW, dest[1]))
    out.append(pre)
    for k in range(4):
        def f(k=k):
            A.e("v_xor_b32 v%d, s%d, v%d" % (V_T + 4, 35 + (p % 2), V_OFFK + k))
            A.vmem(tag, "buffer_load_dwordx4 v%d, s[8:11], s%d offen offset:%d %s lds" % (V_T + 4, S_T2, k * 1024, NT))
        out.append(f)
    return out

def emit_seq(seq):
    for f in seq:
        f()
        A.e("s_nop 0")

def lane_id(dst):
    A.e("v_mbcnt_lo_u32_b32 v%d, -1, 0" % dst)
    A.e("v_mbcnt_hi_u32_b32 v%d, -1, v%d" % (dst, dst))

def q_delta(bases):
    d = V_T + 3
    t = V_T + 2
    lane_id(t)
    A.e("v_bfe_u32 v%d, v%d, 3, 2" % (t, t))
    for p in range(4):
        sg, c = bases[p]
        A.e("s_add_u32 s%d, s%d, 0x%x" % (S_T0, sg, (c - p * 4096) & 0xffffffff))
        if p == 0:
            A.e("v_mov_b32 v%d, s%d" % (d, S_T0))
        else:
            A.e("v_cmp_eq_u32 vcc, %d, v%d" % (p, t))
            A.e("v_mov_b32 v%d, s%d" % (V_T + 1, S_T0))
            A.e("s_nop 0")
            A.e("v_cndmask_b32 v%d, v%d, v%d, vcc" % (d, d, V_T + 1))

def q_reads(qb, bases):
    out = [(12, lambda: q_delta(bases))]
    for s in range(16):
        def f(s=s):
            e_, ff = s // 8, s % 8
            A.e("v_add_u32 v%d, v%d, v%d" % (V_T + 2, V_ADK + ff, V_T + 3))
            A.ds("Q", "ds_read_b128 %s, v%d offset:%d" % (Qop(qb, s), V_T + 2, e_ * 256))
        out.append((2, f))
    return out

def softmaxB_stream(buf):
    st = []
    if os.environ.get("NOSM"): return st
    for ks in range(2):
        for qb in range(2):
            for i in range(4):
                r0 = Sreg(buf, qb, 8 * ks + 2 * i)
                dst = Sreg(buf, qb, 8 * ks + i)
                st.append((2, "v_exp_f32 v%d, v%d" % (r0, r0)))
                st.append((2, "v_exp_f32 v%d, v%d" % (r0 + 1, r0 + 1)))
                st.append((1, "v_add_f32 v%d, v%d, v%d" % (V_L + qb, V_L + qb, r0)))
                st.append((1, "v_add_f32 v%d, v%d, v%d" % (V_L + qb, V_L + qb, r0 + 1)))
                st.append((1, "v_cvt_pk_bf16_f32 v%d, v%d, v%d" % (dst, r0, r0 + 1)))
    return st

def softmaxA_stream(buf):
    if os.environ.get("NOSM"): return [(1, "v_mov_b32 v%d, 0" % V_MX)]
    ops = []
    xs = []
    for qb in range(2):
        for r in range(16):
            x = Sreg(buf, qb, r)
            ops.append("v_fma_f32 v%d, v%d, s%d, -v%d" % (x, x, S_C, V_MC + qb))
            xs.append(x)
    mx = [(2, "v_max3_f32 v%d, v%d, v%d, v%d" % (V_MX, xs[0], xs[1], xs[2]))]
    i = 3
    while i < 32:
        a = xs[i]; b = xs[i + 1] if i + 1 < 32 else xs[i]
        mx.append((min(i + 1, 31), "v_max3_f32 v%d, v%d, v%d, v%d" % (V_MX, V_MX, a, b)))
        i += 2
    res = []
    mi = 0
    for k, o in enumerate(ops):
        res.append((1, o))
        while mi < len(mx) and mx[mi][0] <= k - 1:
            res.append((1, mx[mi][1])); mi += 1
    while mi < len(mx):
        res.append((1, mx[mi][1])); mi += 1
    return res

def init_stream(buf):
    st = []
    t, t2 = V_MX, V_T + 1
    for qb in range(2):
        xs = [Sreg(buf, qb, r) for r in range(16)]
        for x in xs:
            st.append((1, "v_mul_f32 v%d, s%d, v%d" % (x, S_C, x)))
        st.append((1, "v_max3_f32 v%d, v%d, v%d, v%d" % (t, xs[0], xs[1], xs[2])))
        for i in range(3, 15, 2):
            st.append((1, "v_max3_f32 v%d, v%d, v%d, v%d" % (t, t, xs[i], xs[i + 1])))
        def fin(qb=qb, xs=xs):
            A.e("v_max_f32 v%d, v%d, v%d" % (t, t, xs[15]))
            A.e("v_mov_b32 v%d, v%d" % (t2, t))
            A.e("s_nop 1")
            A.e("v_permlane32_swap_b32 v%d, v%d" % (t, t2))
            A.e("s_nop 1")
            A.e("v_max_f32 v%d, v%d, v%d" % (V_MC + qb, t, t2))
            A.e("v_mov_b32 v%d, 0" % (V_L + qb))
        st.append((9, fin))
        for x in xs:
            st.append((1, "v_sub_f32 v%d, v%d, v%d" % (x, x, V_MC + qb)))
    return st

class Stream:
    def __init__(self, items, earliest=0, maxper=99):
        self.items = [(it[0], it[1], (it[2] if len(it) > 2 else earliest)) for it in items]
        self.maxper = maxper
    def __bool__(self): return bool(self.items)

class Filler:
    def __init__(self):
        self.credit = 0.0
        self.g = 0
    def gap(self, used_fixed, streams):
        self.credit += BUDGET - used_fixed
        cnt = {}
        progress = True
        while progress:
            progress = False
            for st in streams:
                if st.items and (st.items[0][2]() if callable(st.items[0][2]) else st.items[0][2] <= self.g) and cnt.get(id(st), 0) < st.maxper and \
                   (st.items[0][0] <= self.credit + 1e-9 or (st.items[0][0] > BUDGET and self.credit > 0)):
                    c, it, _ = st.items.pop(0)
                    if callable(it): it()
                    else: A.e(it)
                    self.credit -= c
                    cnt[id(st)] = cnt.get(id(st), 0) + 1
                    progress = True
                    break
        if self.credit > BUDGET: self.credit = BUDGET
        self.g += 1

FLUSHING = [False]
def flush(streams, nop_between=False):
    FLUSHING[0] = True
    _flush(streams)
    FLUSHING[0] = False
def _flush(streams):
    for st in streams:
        while st.items:
            c, it, _ = st.items.pop(0)
            if st.maxper == 1: A.e("s_nop 0")
            if callable(it): it()
            else: A.e(it)

def dmastream(seq, earliest=0):
    return Stream([(1, f) for f in seq], earliest, maxper=1)

def qk_group(F, Tk, buf, streams, vpre=None, bar=None, kpre=None):
    for m in range(32):
        s, qb = m // 2, m % 2
        if qb == 0:
            A.wait_ds(("K", s), force=True)
        c = "0" if s == 0 else vr(Sreg(buf, qb), 16)
        A.e("v_mfma_f32_32x32x16_bf16 %s, %s, %s, %s" % (vr(Sreg(buf, qb), 16), ar(A_KF + 4 * (s % 4), 4), Qop(qb, s), c))
        used = 0
        if qb == 1:
            used += 1
            if s + 4 < 16:
                kread(Tk, s + 4); used += 1
        if vpre and m >= 24:
            pos = (m - 24) // 2
            ks, db = vpre[1][pos]
            vread(vpre[0], pos, ks, db, (m - 24) % 2); used += 1
        if bar and m == bar[0]:
            bar[1](); used += 2
        if kpre is not None:
            for s2 in {28: [0, 1], 30: [2], 31: [3]}.get(m, []):
                kread(kpre, s2); used += 1
        F.gap(used, streams)

def pv_group(F, T, order, streams, bar=None, kpre=None, first=False):
    cb = T % 2
    for m in range(32):
        pos, qb = m // 2, m % 2
        ks, db = order[pos]
        if qb == 0:
            A.wait_ds(("V", pos), force=True)
        c = "0" if (first and ks == 0) else Oop(db, qb)
        A.e("v_mfma_f32_32x32x16_bf16 %s, %s, %s, %s" % (Oop(db, qb), ar(A_VF + 4 * (pos % 4), 4), vr(Sreg(cb, qb, 8 * ks), 4), c))
        used = 0
        if qb == 1:
            used += 1
            if pos + 4 < 16:
                k2, d2 = order[pos + 4]
                vread(T, pos + 4, k2, d2, 0); vread(T, pos + 4, k2, d2, 1); used += 2
        if bar and m == bar[0]:
            bar[1](); used += 2
        if kpre is not None and m >= 28:
            kread(kpre, m - 28); used += 1
        F.gap(used, streams)

def check_slow(nb):
    site = site_cnt[0]; site_cnt[0] += 1
    A.e("v_cmp_lt_f32 vcc, 0x41000000, v%d" % V_MX)
    A.e("s_cbranch_vccz L_back_%d" % site)
    A.e("s_call_b64 s[%d:%d], L_slow_%d" % (S_RET, S_RET + 1, nb))
    A.label("L_back_%d" % site)

def slow_block(buf):
    A.label("L_slow_%d" % buf)
    A.e("s_nop 15")
    t, t2, al = V_T, V_T + 1, V_T + 2
    for qb in range(2):
        xs = [Sreg(buf, qb, r) for r in range(16)]
        A.e("v_max3_f32 v%d, v%d, v%d, v%d" % (t, xs[0], xs[1], xs[2]))
        for i in range(3, 15, 2):
            A.e("v_max3_f32 v%d, v%d, v%d, v%d" % (t, t, xs[i], xs[i + 1]))
        A.e("v_max_f32 v%d, v%d, v%d" % (t, t, xs[15]))
        A.e("v_mov_b32 v%d, v%d" % (t2, t))
        A.e("s_nop 1")
        A.e("v_permlane32_swap_b32 v%d, v%d" % (t, t2))
        A.e("s_nop 1")
        A.e("v_max3_f32 v%d, v%d, v%d, 0" % (t, t, t2))
        A.e("v_exp_f32 v%d, -v%d" % (al, t))
        A.e("v_add_f32 v%d, v%d, v%d" % (V_MC + qb, V_MC + qb, t))
        for x in xs:
            A.e("v_sub_f32 v%d, v%d, v%d" % (x, x, t))
        A.e("v_mul_f32 v%d, v%d, v%d" % (V_L + qb, V_L + qb, al))
        for db in range(8):
            k, b = Oloc(db, qb)
            for r in range(16):
                if k == "v":
                    A.e("v_mul_f32 v%d, v%d, v%d" % (b + r, b + r, al))
                else:
                    tt = V_T + (r % 2)
                    A.e("v_accvgpr_read_b32 v%d, a%d" % (tt, b + r))
                    A.e("v_mul_f32 v%d, v%d, v%d" % (tt, tt, al))
                    A.e("v_accvgpr_write_b32 a%d, v%d" % (b + r, tt))
    A.e("s_nop 1")
    A.e("s_setpc_b64 s[%d:%d]" % (S_RET, S_RET + 1))

def epilogue_stream(sq, gate):
    st = []
    WA = Oloc(0, 0)[1] + 8
    RD = [Oloc(1, 0)[1], Oloc(1, 1)[1]]
    AT = Oloc(0, 1)[1]
    def inv():
        for qb in range(2):
            A.e("v_mov_b32 v%d, v%d" % (V_T, V_L + qb))
            A.e("s_nop 1")
            A.e("v_permlane32_swap_b32 v%d, v%d" % (V_L + qb, V_T))
            A.e("s_nop 1")
            A.e("v_add_f32 v%d, v%d, v%d" % (V_T, V_T, V_L + qb))
            A.e("v_rcp_f32 v%d, v%d" % (V_INV + qb, V_T))
    st.append((14, inv, 0))
    def addr1():
        lane_id(V_T + 1)
        A.e("v_lshrrev_b32 v%d, 3, v%d" % (V_T, V_T + 1))
        A.e("v_and_b32 v%d, 7, v%d" % (V_T + 1, V_T + 1))
        A.e("v_lshlrev_b32 v%d, 9, v%d" % (V_RA, V_T))
        A.e("v_lshl_add_u32 v%d, v%d, 4, v%d" % (V_OST, V_T + 1, V_RA))
        A.e("v_xor_b32 v%d, v%d, v%d" % (V_T + 1, V_T + 1, V_T))
        A.e("v_lshlrev_b32 v%d, 7, v%d" % (V_T, V_T))
        A.e("v_lshl_add_u32 v%d, v%d, 4, v%d" % (V_T, V_T + 1, V_T))
        A.e("v_add_u32 v%d, s%d, v%d" % (V_RA, S_STG, V_T))
    st.append((10, addr1, 0))
    def addr2():
        lane_id(WA + 7)
        A.e("v_and_b32 v%d, 31, v%d" % (V_T, WA + 7))
        A.e("v_lshrrev_b32 v%d, 5, v%d" % (V_T + 1, WA + 7))
        A.e("v_lshlrev_b32 v%d, 7, v%d" % (WA + 7, V_T))
        A.e("v_lshl_add_u32 v%d, v%d, 3, v%d" % (WA + 7, V_T + 1, WA + 7))
        A.e("v_add_u32 v%d, s%d, v%d" % (WA + 7, S_STG, WA + 7))
        A.e("v_and_b32 v%d, 7, v%d" % (V_T, V_T))
        for c in range(8):
            A.e("v_xor_b32 v%d, %d, v%d" % (V_T + 1, c, V_T))
            A.e("v_lshl_add_u32 v%d, v%d, 4, v%d" % (WA + c, V_T + 1, WA + 7))
    def rdback(b):
        half = b % 2
        def f():
            A.wait_ds([("W", b)])
            for k in range(4):
                A.ds(("R", b), "ds_read_b128 %s, v%d offset:%d" % (vr(RD[half] + 4 * k, 4), V_RA, half * 4096 + k * 1024))
        return (5, f)
    def store(b):
        dp, qb = b // 2, b % 2
        half = b % 2
        out = []
        for k in range(4):
            def f(k=k):
                A.e("s_add_u32 s%d, s%d, 0x%x" % (S_T0, sq, qb * 16384 + dp * 128 + k * 4096))
                if k == 0: A.wait_ds([("R", b)])
                A.vmem("O", "buffer_store_dwordx4 %s, v%d, s[20:23], s%d offen offset:0 %s" % (vr(RD[half] + 4 * k, 4), V_OST, S_T0, NTO))
            out.append((3, f))
        return out
    for b in range(8):
        dp, qb = b // 2, b % 2
        half = b % 2
        ready = 8 * dp + 7 + 4
        for dd in range(2):
            db = 2 * dp + dd
            k, ob = Oloc(db, qb)
            if k == "a":
                for r in range(16):
                    st.append((1, "v_accvgpr_read_b32 v%d, a%d" % (AT + r, ob + r), ready))
                base = AT
            else:
                base = ob
            for z in range(8):
                def mul2(z=z, base=base, qb=qb):
                    if FLUSHING[0]:
                        A.e("v_pk_mul_f32 %s, %s, %s op_sel:[0,%d] op_sel_hi:[1,%d]" % (vr(base + 2 * z, 2), vr(base + 2 * z, 2), vr(V_INV, 2), qb, qb))
                    else:
                        A.e("v_mul_f32 v%d, v%d, v%d" % (base + 2 * z, base + 2 * z, V_INV + qb))
                        A.e("v_mul_f32 v%d, v%d, v%d" % (base + 2 * z + 1, base + 2 * z + 1, V_INV + qb))
                st.append((2, mul2, ready))
            for z in range(8):
                st.append((1, "v_cvt_pk_bf16_f32 v%d, v%d, v%d" % (base + z, base + 2 * z, base + 2 * z + 1), ready))
            if b == 0 and dd == 0:
                st.append((24, addr2, ready))
            for z in range(4):
                def w(z=z, base=base, dd=dd, b=b, half=half):
                    A.ds(("W", b), "ds_write_b64 v%d, %s offset:%d" % (WA + 4 * dd + z, vr(base + 2 * z, 2), half * 4096))
                st.append((1, w, gate if gate else ready))
            if dd == 0 and b >= 1:
                st += store(b - 1)
        st.append(rdback(b))
    st += store(7)
    return Stream(st)

def shift_tags(q, d):
    return [(t[0], t[1] + d) if isinstance(t, tuple) and t[0] in ("K", "V") else t for t in q]

BASES_B = [(S_STG, 0), (S_STG, 4096), (S_LDSW, 0), (S_LDSW, 16384)]
ORD_N = pv_order(False)
ORD_D = pv_order(True)

def mkbar(need, full_lds=False):
    def f():
        if full_lds: A.wait_ds_all()
        A.wait_vm(need)
        A.e("s_barrier")
    return f

def phase2(u, j):
    T = 16 * u + j
    last_unit = (u == 1)
    pre, post = [], []
    need = []
    if j + 2 <= 15: need.append(("K", T + 2))
    if j + 1 <= 15: need.append(("V", T + 1))
    if j + 3 <= 15: post += dma_v(T + 3)
    if j + 5 <= 15: post += dma_k(T + 5)
    BAR = 10
    if not last_unit:
        if j == 10:
            post += dma_q("Q1", S_QN, 0, 0, ('stg', 0))
        if j == 11:
            post += dma_q("Q1", S_QN, 0, 1, ('stg', 4096)) + dma_q("Q1", S_QN, 0, 2, ('slot', 0))
        if j == 12:
            post += dma_q("Q1", S_QN, 0, 3, ('slot', 16384))
        if j == 13:
            post += dma_v(16) + dma_k(16)
        if j == 14:
            pre = [(1, lambda: A.wait_vm(["Q1"]))] + q_reads(0, BASES_B)
            post += [lambda: A.wait_ds(["Q"])]
            post += dma_q("Q2", S_QN, 1, 0, ('stg', 0)) + dma_q("Q2", S_QN, 1, 1, ('stg', 4096))
            post += dma_q("Q2", S_QN, 1, 2, ('slot', 0)) + dma_q("Q2", S_QN, 1, 3, ('slot', 16384))
    F = Filler()
    spre = Stream(pre)
    def bar():
        flush([spre])
        mkbar(need)()
    streams = [dmastream(post, BAR + 1), spre, Stream(softmaxA_stream((T + 1) % 2), 6)]
    pv_group(F, T, ORD_N, streams, bar=(BAR, bar), kpre=(T + 2 if j + 2 <= 15 else None), first=(j == 0))
    flush(streams)
    check_slow((T + 1) % 2)

def phase1(u, j):
    T = 16 * u + j
    F = Filler()
    streams = [Stream(softmaxB_stream(T % 2))]
    qk_group(F, T + 1, (T + 1) % 2, streams, vpre=(T, ORD_N))
    flush(streams)

def iteration(u, j):
    phase1(u, j)
    phase2(u, j)

def gen_loop(u):
    start = len(A.lines)
    site0 = site_cnt[0]
    for j in range(1, 5): iteration(u, j)
    text1 = A.lines[start:]
    vm1, lds1 = list(A.vm), list(A.lds)
    del A.lines[start:]
    A.vm = shift_tags(vm1, -4); A.lds = list(lds1); site_cnt[0] = site0
    for j in range(1, 5): iteration(u, j)
    text2 = A.lines[start:]
    assert A.vm == vm1 and A.lds == lds1, "loop not steady"
    assert len(text1) == len(text2)
    merged = []
    for a, b in zip(text1, text2):
        if a != b:
            assert a.strip().startswith("s_waitcnt") and b.strip().startswith("s_waitcnt"), (a, b)
            na = int(a[a.index("(") + 1:a.index(")")]); nb = int(b[b.index("(") + 1:b.index(")")])
            merged.append(a if na <= nb else b)
        else:
            merged.append(a)
    del A.lines[start:]
    A.e("s_mov_b32 s%d, 0" % S_CNT)
    A.label("L_loop_%d" % u)
    A.lines += merged
    A.e("s_add_u32 s%d, s%d, 1" % (S_CNT, S_CNT))
    A.e("s_cmp_lt_u32 s%d, 2" % S_CNT)
    A.e("s_cbranch_scc1 L_loop_%d" % u)
    A.vm = shift_tags(A.vm, 4)

def head_of_unit(u, F, estream, extra_dma):
    T0 = 16 * u
    g0 = F.g
    streams = []
    d1 = dmastream(extra_dma, g0)
    streams.append(d1)
    if estream: streams.append(estream)
    qk_group(F, T0, 0, streams, bar=(27, mkbar([("K", T0 + 1)], full_lds=True)), kpre=T0 + 1)
    g1 = F.g
    if os.environ.get("FINE") and u == 1:
        ls = list(A.lds); stamp(); A.lds = ls
    post = (dma_v(2) if u == 0 else []) + dma_k(T0 + 4)
    sm = Stream(init_stream(0) + softmaxB_stream(0), g1 + 3)
    d1.items += dmastream(post, g1).items
    streams = [d1, sm]
    if estream: streams.append(estream)
    qk_group(F, T0 + 1, 1, streams, vpre=(T0, ORD_N), bar=(22, mkbar([("V", T0)])))
    if os.environ.get("FINE") and u == 1:
        ls = list(A.lds); stamp(); A.lds = ls
        print("left after head groups:", [len(x.items) for x in streams])
    flush(streams)
    A.e("s_nop 1")

def tail_of_unit(u):
    T = 16 * u + 15
    last = (u == 1)
    for pos in range(4):
        ks, db = ORD_D[pos]
        vread(T, pos, ks, db, 0); vread(T, pos, ks, db, 1)
    sm = Stream(softmaxB_stream(1))
    extra = [] if last else (dma_v(17) + dma_k(17))
    k = 0
    while sm.items:
        c, it, _ = sm.items.pop(0); A.e(it); k += 1
        if extra and k % 6 == 0:
            extra.pop(0)()
    emit_seq(extra)
    A.e("s_nop 1")
    F = Filler()
    if last:
        E = epilogue_stream(S_QOFF, None)
        pv_group(F, T, ORD_D, [E])
        A.e("s_nop 15")
        flush([E])
        return
    QAT = 20
    qs = Stream([(1, lambda: A.wait_vm(["Q2"]))] + q_reads(1, BASES_B) + [(1, lambda: A.wait_ds(["Q"]))], QAT)
    E = epilogue_stream(S_QOFF, lambda: not qs.items)
    streams = [dmastream(dma_v(18), 11), qs, E]
    pv_group(F, T, ORD_D, streams, bar=(10, mkbar([("K", 16)])), kpre=16)
    flush([streams[0], qs])
    stamp()
    head_of_unit(1, F, E, dma_k(18) + dma_k(19))
    A.e("s_mov_b32 s%d, s%d" % (S_QOFF, S_QN))

def unit_body(u):
    stamp()
    phase2(u, 0)
    gen_loop(u)
    for j in range(9, 15):
        iteration(u, j)
    stamp()
    tail_of_unit(u)

hdr = open("standalone__gqa_softmax__near_ridge.s.ref").read().split("\n")
head = []
for l in hdr:
    if l.startswith("; @launch"):
        head.append("; @launch grid=(256,1,1) block=(256,1,1) lds=163840")
    elif l.startswith(";"):
        head.append(l)
    else:
        break

A.e("s_cmp_ge_u32 s2, 256")
A.e("s_cbranch_scc1 L_end")
A.e("s_load_dwordx4 s[4:7], s[0:1], 0")
A.e("s_load_dwordx4 s[36:39], s[0:1], 16")
if STAMPS:
    A.e("s_load_dwordx2 s[48:49], s[0:1], %d" % (32 if DBG else 40))
stamp()
A.e("s_and_b32 s42, s2, 7")
A.e("s_lshr_b32 s43, s2, 3")
A.e("s_and_b32 s44, s43, 1")
A.e("s_lshr_b32 s43, s43, 1")
A.e("s_lshl_b32 s42, s42, 4")
A.e("s_add_u32 s42, s42, s43")
A.e("s_lshl_b32 s45, s42, 1")
A.e("s_add_u32 s45, s45, s44")
A.e("v_lshrrev_b32 v33, 6, v0")
A.e("v_and_b32 v32, 63, v0")
A.e("s_nop 0")
A.e("v_readfirstlane_b32 s%d, v33" % S_WAVE)
A.e("s_mov_b32 s%d, %s" % (S_C, f32hex(C_SCALE)))
A.e("s_nop 2")
A.e("s_lshl_b32 s%d, s%d, 12" % (S_LDSW, S_WAVE))
A.e("s_lshl_b32 s%d, s%d, 13" % (S_STG, S_WAVE))
A.e("s_add_u32 s%d, s%d, 0x%x" % (S_STG, S_STG, STG))
A.e("s_lshl_b32 s%d, s42, 18" % S_KOFF)
A.e("s_add_u32 s%d, s%d, s%d" % (S_KOFF, S_KOFF, S_LDSW))
A.e("s_mov_b32 s%d, s%d" % (S_VOFF, S_KOFF))
A.e("s_lshl_b32 s%d, s45, 17" % S_QOFF)
A.e("s_lshl_b32 s43, s%d, 15" % S_WAVE)
A.e("s_add_u32 s%d, s%d, s43" % (S_QOFF, S_QOFF))
A.e("s_add_u32 s%d, s%d, 0x2000000" % (S_QN, S_QOFF))
A.e("s_and_b32 s46, s%d, 1" % S_WAVE)
A.e("s_lshl_b32 s46, s46, 7")
A.e("s_xor_b32 s47, s46, 0x80")
A.e("v_and_b32 v33, 31, v32")
A.e("v_lshrrev_b32 v34, 5, v32")
A.e("v_lshlrev_b32 v35, 9, v33")
A.e("v_and_b32 v36, 15, v33")
A.e("v_xor_b32 v36, v36, v34")
for f in range(8):
    A.e("v_xor_b32 v37, %d, v36" % (2 * f))
    A.e("v_lshl_add_u32 v%d, v37, 4, v35" % (V_ADK + f))
A.e("s_and_b32 s43, s%d, 1" % S_WAVE)
A.e("s_lshl_b32 s43, s43, 3")
A.e("v_lshlrev_b32 v35, 9, v34")
A.e("v_xor_b32 v36, v33, v34")
A.e("v_xor_b32 v36, s43, v36")
for k in range(4):
    A.e("v_xor_b32 v37, %d, v36" % (2 * k))
    A.e("v_lshl_add_u32 v%d, v37, 4, v35" % (V_OFFK + k))
A.e("v_lshlrev_b32 v36, 2, v34")
A.e("v_xor_b32 v36, v33, v36")
for k2 in range(2):
    A.e("v_xor_b32 v37, %d, v36" % (8 * k2))
    A.e("v_lshl_add_u32 v%d, v37, 4, v35" % (V_OFFV + k2))
A.e("v_bfe_u32 v35, v32, 2, 2")
A.e("v_lshl_add_u32 v36, v34, 2, v35")
A.e("v_lshlrev_b32 v36, 9, v36")
A.e("v_add_u32 v36, 0x10000, v36")
A.e("v_bfe_u32 v37, v32, 4, 1")
A.e("v_lshl_add_u32 v36, v37, 5, v36")
A.e("v_and_b32 v37, 3, v32")
A.e("v_lshl_add_u32 v36, v37, 3, v36")
for f in range(4):
    A.e("v_xor_b32 v37, %d, v35" % f)
    A.e("v_lshl_add_u32 v%d, v37, 6, v36" % (V_ADV + f))
A.e("s_waitcnt lgkmcnt(0)")
for (d, p) in ((8, 4), (12, 6), (16, 36), (20, 38)):
    A.e("s_mov_b32 s%d, s%d" % (d, p))
    A.e("s_and_b32 s%d, s%d, 0xffff" % (d + 1, p + 1))
    A.e("s_mov_b32 s%d, 0x4000000" % (d + 2))
    A.e("s_mov_b32 s%d, 0x20000" % (d + 3))
A.e("s_mov_b32 s35, s46")
A.e("s_mov_b32 s36, s47")
STAG = int(os.environ.get("STAG", "0"))
A.e("s_lshr_b32 s43, s2, 4")
A.e("s_and_b32 s43, s43, 1")
def gwait(n):
    A.e("s_cmp_eq_u32 s43, 0")
    A.e("s_cbranch_scc1 L_gw%d" % n)
    A.e("s_waitcnt vmcnt(0)")
    A.label("L_gw%d" % n)
emit_seq(dma_k(0))
if STAG >= 2: gwait(0)
emit_seq(dma_q("Q1", S_QOFF, 0, 0, ('stg', 0)) + dma_q("Q1", S_QOFF, 0, 1, ('stg', 4096)))
if STAG >= 3: gwait(1)
emit_seq(dma_q("Q1", S_QOFF, 0, 2, ('slot', 32768)) + dma_q("Q1", S_QOFF, 0, 3, ('slot', 49152)))
if STAG >= 1: gwait(2)
for p in range(4):
    emit_seq(dma_q("Q2", S_QOFF, 1, p, ('slot', 65536 + p * 16384)))
    if STAG >= 3 and p == 1: gwait(3)
emit_seq(dma_k(1))
A.wait_vm(["Q1"])
for c, f in q_reads(0, [(S_STG, 0), (S_STG, 4096), (S_LDSW, 32768), (S_LDSW, 49152)]): f()
A.wait_vm(["Q2"])
for c, f in q_reads(1, [(S_LDSW, 65536 + p * 16384) for p in range(4)]): f()
A.wait_ds(["Q"])
A.e("s_barrier")
stamp()
for s in range(4):
    kread(0, s)
F0 = Filler()
head_of_unit(0, F0, None, dma_v(0) + dma_k(2) + dma_v(1) + dma_k(3))
unit_body(0)
unit_body(1)
if STAMPS:
    stamp()
    A.e("s_waitcnt vmcnt(0)")
    stamp()
    n = nstamp[0]
    A.e("s_mov_b32 s8, s48")
    A.e("s_and_b32 s9, s49, 0xffff")
    if DBG:
        A.e("s_mov_b32 s10, 256")
        A.e("s_mov_b32 s11, 0x20000")
        A.e("s_cmp_lg_u32 s2, 77")
        A.e("s_cbranch_scc1 L_end")
        A.e("s_cmp_lg_u32 s%d, 0" % S_WAVE)
        A.e("s_cbranch_scc1 L_end")
        A.e("v_mov_b32 v1, 0")
        for i in range(1, n // 2):
            A.e("s_sub_u32 s32, s%d, s50" % (50 + 4 * i))
            A.e("v_mov_b32 v2, s32")
            A.e("buffer_store_dword v2, v1, s[8:11], 0 offen offset:%d" % (4 * (i - 1)))
            A.e("s_nop 1")
        A.e("s_sub_u32 s32, s%d, s52" % (52 + 4 * (n // 2 - 1)))
        A.e("v_mov_b32 v2, s32")
        A.e("buffer_store_dword v2, v1, s[8:11], 0 offen offset:%d" % (4 * (n // 2 - 1)))
    else:
        A.e("s_mov_b32 s10, 0x1000000")
        A.e("s_mov_b32 s11, 0x20000")
        A.e("s_lshl_b32 s32, s2, 2")
        A.e("s_add_u32 s32, s32, s%d" % S_WAVE)
        A.e("s_mul_i32 s32, s32, %d" % (n * 8))
        A.e("v_mov_b32 v1, 0")
        for i in range(n):
            A.e("v_mov_b32 v2, s%d" % (50 + 2 * i))
            A.e("v_mov_b32 v3, s%d" % (51 + 2 * i))
            A.e("buffer_store_dwordx2 v[2:3], v1, s[8:11], s32 offen offset:%d" % (8 * i))
            A.e("s_nop 1")
    print("nstamps", n)
A.label("L_end")
A.e("s_endpgm")
slow_block(0)
slow_block(1)

body = "\n".join(A.lines)
text = "\n".join(head) + """
.amdgcn_target "amdgcn-amd-amdhsa--gfx950"
.text
.globl %s
.p2align 8
.type %s,@function
%s:
%s
.section .rodata,"a"
.p2align 6
.amdhsa_kernel %s
  .amdhsa_next_free_vgpr 512
  .amdhsa_next_free_sgpr 102
  .amdhsa_accum_offset 256
  .amdhsa_group_segment_fixed_size 0
  .amdhsa_kernarg_size 48
  .amdhsa_user_sgpr_count 2
  .amdhsa_user_sgpr_kernarg_segment_ptr 1
  .amdhsa_system_sgpr_workgroup_id_x 1
.end_amdhsa_kernel
""" % (NAME, NAME, NAME, body, NAME)
open(OUT, "w").write(text)
print("wrote", OUT, len(A.lines), "lines", len(text), "bytes")
```

```python
import sys, struct, os

OUT = sys.argv[1] if len(sys.argv) > 1 else "standalone__gqa_softmax__near_ridge.s"
STAMPS = len(sys.argv) > 2 and sys.argv[2] in ("stamps", "dbg")
DBG = len(sys.argv) > 2 and sys.argv[2] == "dbg"
NAME = "standalone__gqa_softmax__near_ridge_kernel"
NT = os.environ.get("NT", "nt")
NTO = os.environ.get("NTO", "")
BUDGET = float(os.environ.get("BUDGET", "5.0"))

def f32hex(x):
    return "0x%08x" % struct.unpack("<I", struct.pack("<f", x))[0]

C_SCALE = 0.0625 * 1.4426950408889634

V_OFFK = 0
V_OFFV = 4
V_ADK = 6
V_ADV = 14
V_MC = 18
V_L = 20
V_MX = 22
V_RA = 23
V_INV = 24
V_OST = 26
V_T = 27
V_S = 32
A_Q = 0
A_KF = 128
A_VF = 144

S_KOFF, S_VOFF, S_LDSW, S_CNT, S_C, S_QOFF, S_WAVE, S_QN, S_T0, S_T1, S_STG, S_T2 = 24, 25, 26, 27, 28, 29, 30, 31, 32, 33, 34, 37
S_RET = 40
S_KW, S_VW, S_KR, S_VR, S_D, S_U, S_QL0, S_QL1, S_XX, S_SO, S_LDSV = 50, 51, 52, 53, 54, 55, 60, 61, 62, 63, 49
S_SRD = 56
STG = 131072

def Sreg(buf, qb, r=0): return V_S + 32 * buf + 16 * qb + r
def vr(a, n): return "v[%d:%d]" % (a, a + n - 1)
def ar(a, n): return "a[%d:%d]" % (a, a + n - 1)
def Qop(qb, s): return ar(A_Q + 64 * qb + 4 * s, 4)
def Oloc(db, qb):
    n = db * 2 + qb
    return ("v", 96 + 16 * n) if n < 10 else ("a", 160 + 16 * (n - 10))
def Oop(db, qb):
    k, b = Oloc(db, qb)
    return "%s[%d:%d]" % (k, b, b + 15)

class Asm:
    def __init__(self):
        self.lines = []
        self.lds = []
        self.vm = []
    def e(self, s):
        self.lines.append("    " + s)
    def label(self, s):
        self.lines.append(s + ":")
    def ds(self, tag, s):
        self.e(s); self.lds.append(tag)
    def vmem(self, tag, s):
        self.e(s); self.vm.append(tag)
    def wait_ds(self, tags, force=False):
        if not isinstance(tags, list): tags = [tags]
        idx = [i for i, t in enumerate(self.lds) if t in tags]
        if not idx:
            if not force: return
            n = min(len(self.lds), 15)
        else:
            n = len(self.lds) - 1 - idx[-1]
        n = min(n, 15)
        self.e("s_waitcnt lgkmcnt(%d)" % n)
        self.lds = self.lds[len(self.lds) - n:] if n else []
    def wait_ds_all(self):
        self.e("s_waitcnt lgkmcnt(0)"); self.lds = []
    def wait_vm(self, tags, force=True):
        idx = [i for i, t in enumerate(self.vm) if t in tags]
        if not idx:
            if not force: return
            n = len(self.vm)
        else:
            n = len(self.vm) - 1 - idx[-1]
        n = min(n, 63)
        self.e("s_waitcnt vmcnt(%d)" % n)
        self.vm = self.vm[len(self.vm) - n:] if n else []

A = Asm()
nstamp = [0]
def stamp():
    if not STAMPS: return
    i = nstamp[0]; nstamp[0] += 2
    A.e("s_memrealtime s[%d:%d]" % (64 + 2 * i, 65 + 2 * i))
    A.e("s_memtime s[%d:%d]" % (66 + 2 * i, 67 + 2 * i))
    A.e("s_waitcnt lgkmcnt(0)")
    A.lds = []

site_cnt = [0]

def kslot(T):
    u, t = T // 16, T % 16
    return (t + 2 * u) % 4
def vslot(T):
    return T % 4

def kread(T, s):
    if os.environ.get("NOLDS") and T > 1: return
    e_, f = s // 8, s % 8
    A.ds(("K", s), "ds_read_b128 %s, v%d offset:%d" % (ar(A_KF + 4 * (s % 4), 4), V_ADK + f, e_ * 256))

def vread(T, pos, ks, db, t):
    if os.environ.get("NOLDS") and T > 0: return
    e_, f = db // 4, db % 4
    A.ds(("V", pos), "ds_read_b64_tr_b16 %s, v%d offset:%d" % (
        ar(A_VF + 4 * (pos % 4) + 2 * t, 2), V_ADV + f, ks * 8192 + t * 4096 + e_ * 256))

def pv_order(dbmajor):
    if dbmajor:
        return [(ks, db) for db in range(8) for ks in range(2)]
    return [(ks, db) for ks in range(2) for db in range(8)]

def dma_k(T):
    out = []
    if T == 16:
        out.append(lambda: A.e("s_add_u32 s%d, s%d, 0x%x" % (S_KOFF, S_KOFF, 127 * 262144)))
    out.append(lambda: A.e("s_add_u32 m0, s%d, s%d" % (S_LDSW, S_KW)))
    for k in range(4):
        def f(k=k):
            A.vmem(("K", T), "buffer_load_dwordx4 v%d, s[12:15], s%d offen offset:%d %s lds" % (V_OFFK + k, S_KOFF, k * 1024, NT))
        out.append(f)
    def fin():
        A.e("s_add_u32 s%d, s%d, 0x4000" % (S_KOFF, S_KOFF))
        A.e("s_add_u32 s%d, s%d, 0x4000" % (S_KW, S_KW))
        A.e("s_and_b32 s%d, s%d, 0xffff" % (S_KW, S_KW))
    out.append(fin)
    return out

def dma_ktype(T, piece):
    out = []
    def pre():
        A.e("s_add_u32 s%d, s%d, 0x%x" % (S_T2, S_QN, piece * 4096))
        A.e("s_cmp_eq_u32 s%d, 5" % S_CNT)
        A.e("s_cselect_b32 s%d, s8, s12" % S_SRD)
        A.e("s_cselect_b32 s%d, s9, s13" % (S_SRD + 1))
        A.e("s_cselect_b32 s%d, s%d, 0" % (S_XX, 35 + (piece % 2)))
        A.e("s_cselect_b32 s%d, s%d, s%d" % (S_SO, S_T2, S_KOFF))
        A.e("s_cselect_b32 s%d, 0, 0x4000" % S_T2)
        A.e("s_add_u32 m0, s%d, s%d" % (S_LDSW, S_KW))
    out.append(pre)
    for k in range(4):
        def f(k=k):
            A.e("v_xor_b32 v%d, s%d, v%d" % (V_T + 4, S_XX, V_OFFK + k))
            A.vmem(("K", T), "buffer_load_dwordx4 v%d, s[%d:%d], s%d offen offset:%d %s lds" % (V_T + 4, S_SRD, S_SRD + 3, S_SO, k * 1024, NT))
        out.append(f)
    def fin():
        A.e("s_add_u32 s%d, s%d, s%d" % (S_KOFF, S_KOFF, S_T2))
        A.e("s_add_u32 s%d, s%d, 0x4000" % (S_KW, S_KW))
        A.e("s_and_b32 s%d, s%d, 0xffff" % (S_KW, S_KW))
    out.append(fin)
    return out

def dma_v(T):
    out = []
    if T == 16:
        out.append(lambda: A.e("s_add_u32 s%d, s%d, 0x%x" % (S_VOFF, S_VOFF, 127 * 262144)))
    out.append(lambda: A.e("s_add_u32 m0, s%d, s%d" % (S_LDSV, S_VW)))
    for k in range(4):
        def f(k=k):
            A.vmem(("V", T), "buffer_load_dwordx4 v%d, s[16:19], s%d offen offset:%d %s lds" % (V_OFFV + (k % 2), S_VOFF, k * 1024, NT))
        out.append(f)
    def fin():
        A.e("s_add_u32 s%d, s%d, 0x4000" % (S_VOFF, S_VOFF))
        A.e("s_add_u32 s%d, s%d, 0x4000" % (S_VW, S_VW))
        A.e("s_and_b32 s%d, s%d, 0xffff" % (S_VW, S_VW))
    out.append(fin)
    return out

def adv_k(n=1):
    def sal():
        A.e("s_add_u32 s%d, s%d, 0x%x" % (S_T1, S_KR, n * 0x4000))
        A.e("s_and_b32 s%d, s%d, 0xffff" % (S_T1, S_T1))
        A.e("s_sub_u32 s%d, s%d, s%d" % (S_D, S_T1, S_KR))
        A.e("s_mov_b32 s%d, s%d" % (S_KR, S_T1))
    return [(4, sal)] + [(1, "v_add_u32 v%d, s%d, v%d" % (V_ADK + f, S_D, V_ADK + f)) for f in range(8)]

def adv_v():
    def sal():
        A.e("s_add_u32 s%d, s%d, 0x4000" % (S_T1, S_VR))
        A.e("s_and_b32 s%d, s%d, 0xffff" % (S_T1, S_T1))
        A.e("s_sub_u32 s%d, s%d, s%d" % (S_D, S_T1, S_VR))
        A.e("s_mov_b32 s%d, s%d" % (S_VR, S_T1))
    return [(4, sal)] + [(1, "v_add_u32 v%d, s%d, v%d" % (V_ADV + f, S_D, V_ADV + f)) for f in range(4)]

def dma_q(tag, sq, qb, p, dest):
    out = []
    def pre():
        A.e("s_add_u32 s%d, s%d, 0x%x" % (S_T2, sq, qb * 16384 + p * 4096))
        if dest[0] == 'stg':
            A.e("s_add_u32 m0, s%d, 0x%x" % (S_STG, dest[1]))
        elif dest[0] == 'sg':
            A.e("s_mov_b32 m0, s%d" % dest[1])
        else:
            A.e("s_add_u32 m0, s%d, 0x%x" % (S_LDSW, dest[1]))
    out.append(pre)
    for k in range(4):
        def f(k=k):
            A.e("v_xor_b32 v%d, s%d, v%d" % (V_T + 4, 35 + (p % 2), V_OFFK + k))
            A.vmem(tag, "buffer_load_dwordx4 v%d, s[8:11], s%d offen offset:%d %s lds" % (V_T + 4, S_T2, k * 1024, NT))
        out.append(f)
    return out

def emit_seq(seq):
    for f in seq:
        f()
        A.e("s_nop 0")

def lane_id(dst):
    A.e("v_mbcnt_lo_u32_b32 v%d, -1, 0" % dst)
    A.e("v_mbcnt_hi_u32_b32 v%d, -1, v%d" % (dst, dst))

def q_delta(bases):
    d = V_T + 3
    t = V_T + 2
    lane_id(t)
    A.e("v_bfe_u32 v%d, v%d, 3, 2" % (t, t))
    for p in range(4):
        sg, c = bases[p]
        A.e("s_add_u32 s%d, s%d, 0x%x" % (S_T0, sg, (c - p * 4096) & 0xffffffff))
        A.e("s_sub_u32 s%d, s%d, s%d" % (S_T0, S_T0, S_KR))
        if p == 0:
            A.e("v_mov_b32 v%d, s%d" % (d, S_T0))
        else:
            A.e("v_cmp_eq_u32 vcc, %d, v%d" % (p, t))
            A.e("v_mov_b32 v%d, s%d" % (V_T + 1, S_T0))
            A.e("s_nop 0")
            A.e("v_cndmask_b32 v%d, v%d, v%d, vcc" % (d, d, V_T + 1))

def q_reads(qb, bases):
    out = [(16, lambda: q_delta(bases))]
    for s in range(16):
        def f(s=s):
            e_, ff = s // 8, s % 8
            A.e("v_add_u32 v%d, v%d, v%d" % (V_T + 2, V_ADK + ff, V_T + 3))
            A.ds("Q", "ds_read_b128 %s, v%d offset:%d" % (Qop(qb, s), V_T + 2, e_ * 256))
        out.append((2, f))
    return out

def softmaxB_stream(buf):
    st = []
    if os.environ.get("NOSM"): return st
    for ks in range(2):
        for qb in range(2):
            for i in range(4):
                r0 = Sreg(buf, qb, 8 * ks + 2 * i)
                dst = Sreg(buf, qb, 8 * ks + i)
                st.append((2, "v_exp_f32 v%d, v%d" % (r0, r0)))
                st.append((2, "v_exp_f32 v%d, v%d" % (r0 + 1, r0 + 1)))
                st.append((1, "v_add_f32 v%d, v%d, v%d" % (V_L + qb, V_L + qb, r0)))
                st.append((1, "v_add_f32 v%d, v%d, v%d" % (V_L + qb, V_L + qb, r0 + 1)))
                st.append((1, "v_cvt_pk_bf16_f32 v%d, v%d, v%d" % (dst, r0, r0 + 1)))
    return st

def softmaxA_stream(buf):
    if os.environ.get("NOSM"): return [(1, "v_mov_b32 v%d, 0" % V_MX)]
    ops = []
    xs = []
    for qb in range(2):
        for r in range(16):
            x = Sreg(buf, qb, r)
            ops.append("v_fma_f32 v%d, v%d, s%d, -v%d" % (x, x, S_C, V_MC + qb))
            xs.append(x)
    mx = [(2, "v_max3_f32 v%d, v%d, v%d, v%d" % (V_MX, xs[0], xs[1], xs[2]))]
    i = 3
    while i < 32:
        a = xs[i]; b = xs[i + 1] if i + 1 < 32 else xs[i]
        mx.append((min(i + 1, 31), "v_max3_f32 v%d, v%d, v%d, v%d" % (V_MX, V_MX, a, b)))
        i += 2
    res = []
    mi = 0
    for k, o in enumerate(ops):
        res.append((1, o))
        while mi < len(mx) and mx[mi][0] <= k - 1:
            res.append((1, mx[mi][1])); mi += 1
    while mi < len(mx):
        res.append((1, mx[mi][1])); mi += 1
    return res

def init_stream(buf):
    st = []
    t, t2 = V_MX, V_T + 1
    for qb in range(2):
        xs = [Sreg(buf, qb, r) for r in range(16)]
        for x in xs:
            st.append((1, "v_mul_f32 v%d, s%d, v%d" % (x, S_C, x)))
        st.append((1, "v_max3_f32 v%d, v%d, v%d, v%d" % (t, xs[0], xs[1], xs[2])))
        for i in range(3, 15, 2):
            st.append((1, "v_max3_f32 v%d, v%d, v%d, v%d" % (t, t, xs[i], xs[i + 1])))
        def fin(qb=qb, xs=xs):
            A.e("v_max_f32 v%d, v%d, v%d" % (t, t, xs[15]))
            A.e("v_mov_b32 v%d, v%d" % (t2, t))
            A.e("s_nop 1")
            A.e("v_permlane32_swap_b32 v%d, v%d" % (t, t2))
            A.e("s_nop 1")
            A.e("v_max_f32 v%d, v%d, v%d" % (V_MC + qb, t, t2))
            A.e("v_mov_b32 v%d, 0" % (V_L + qb))
        st.append((9, fin))
        for x in xs:
            st.append((1, "v_sub_f32 v%d, v%d, v%d" % (x, x, V_MC + qb)))
    return st

class Stream:
    def __init__(self, items, earliest=0, maxper=99):
        self.items = [(it[0], it[1], (it[2] if len(it) > 2 else earliest)) for it in items]
        self.maxper = maxper
    def __bool__(self): return bool(self.items)

class Filler:
    def __init__(self):
        self.credit = 0.0
        self.g = 0
    def gap(self, used_fixed, streams):
        self.credit += BUDGET - used_fixed
        cnt = {}
        progress = True
        while progress:
            progress = False
            for st in streams:
                if st.items and (st.items[0][2]() if callable(st.items[0][2]) else st.items[0][2] <= self.g) and cnt.get(id(st), 0) < st.maxper and \
                   (st.items[0][0] <= self.credit + 1e-9 or (st.items[0][0] > BUDGET and self.credit > 0)):
                    c, it, _ = st.items.pop(0)
                    if callable(it): it()
                    else: A.e(it)
                    self.credit -= c
                    cnt[id(st)] = cnt.get(id(st), 0) + 1
                    progress = True
                    break
        if self.credit > BUDGET: self.credit = BUDGET
        self.g += 1

FLUSHING = [False]
def flush(streams, nop_between=False):
    FLUSHING[0] = True
    _flush(streams)
    FLUSHING[0] = False
def _flush(streams):
    for st in streams:
        while st.items:
            c, it, _ = st.items.pop(0)
            if st.maxper == 1: A.e("s_nop 0")
            if callable(it): it()
            else: A.e(it)

def dmastream(seq, earliest=0):
    return Stream([(1, f) for f in seq], earliest, maxper=1)

def qk_group(F, Tk, buf, streams, vpre=None, bar=None, kpre=None, hook=None):
    for m in range(32):
        s, qb = m // 2, m % 2
        if qb == 0:
            A.wait_ds(("K", s), force=True)
        c = "0" if s == 0 else vr(Sreg(buf, qb), 16)
        A.e("v_mfma_f32_32x32x16_bf16 %s, %s, %s, %s" % (vr(Sreg(buf, qb), 16), ar(A_KF + 4 * (s % 4), 4), Qop(qb, s), c))
        used = 0
        if qb == 1:
            used += 1
            if s + 4 < 16:
                kread(Tk, s + 4); used += 1
        if hook: hook(m)
        if vpre and m >= 24:
            pos = (m - 24) // 2
            ks, db = vpre[1][pos]
            vread(vpre[0], pos, ks, db, (m - 24) % 2); used += 1
        if bar and m == bar[0]:
            bar[1](); used += 2
        if kpre is not None:
            for s2 in {28: [0, 1], 30: [2], 31: [3]}.get(m, []):
                kread(kpre, s2); used += 1
        F.gap(used, streams)

def pv_group(F, T, order, streams, bar=None, kpre=None, first=False, hook=None):
    cb = T % 2
    for m in range(32):
        pos, qb = m // 2, m % 2
        ks, db = order[pos]
        if qb == 0:
            A.wait_ds(("V", pos), force=True)
        c = "0" if (first and ks == 0) else Oop(db, qb)
        A.e("v_mfma_f32_32x32x16_bf16 %s, %s, %s, %s" % (Oop(db, qb), ar(A_VF + 4 * (pos % 4), 4), vr(Sreg(cb, qb, 8 * ks), 4), c))
        used = 0
        if qb == 1:
            used += 1
            if pos + 4 < 16:
                k2, d2 = order[pos + 4]
                vread(T, pos + 4, k2, d2, 0); vread(T, pos + 4, k2, d2, 1); used += 2
        if hook: hook(m)
        if bar and m == bar[0]:
            bar[1](); used += 2
        if kpre is not None and m >= 28:
            kread(kpre, m - 28); used += 1
        F.gap(used, streams)

def check_slow(nb):
    site = site_cnt[0]; site_cnt[0] += 1
    A.e("v_cmp_lt_f32 vcc, 0x41000000, v%d" % V_MX)
    A.e("s_cbranch_vccz L_back_%d" % site)
    A.e("s_call_b64 s[%d:%d], L_slow_%d" % (S_RET, S_RET + 1, nb))
    A.label("L_back_%d" % site)

def slow_block(buf):
    A.label("L_slow_%d" % buf)
    A.e("s_nop 15")
    t, t2, al = V_T, V_T + 1, V_T + 2
    for qb in range(2):
        xs = [Sreg(buf, qb, r) for r in range(16)]
        A.e("v_max3_f32 v%d, v%d, v%d, v%d" % (t, xs[0], xs[1], xs[2]))
        for i in range(3, 15, 2):
            A.e("v_max3_f32 v%d, v%d, v%d, v%d" % (t, t, xs[i], xs[i + 1]))
        A.e("v_max_f32 v%d, v%d, v%d" % (t, t, xs[15]))
        A.e("v_mov_b32 v%d, v%d" % (t2, t))
        A.e("s_nop 1")
        A.e("v_permlane32_swap_b32 v%d, v%d" % (t, t2))
        A.e("s_nop 1")
        A.e("v_max3_f32 v%d, v%d, v%d, 0" % (t, t, t2))
        A.e("v_exp_f32 v%d, -v%d" % (al, t))
        A.e("v_add_f32 v%d, v%d, v%d" % (V_MC + qb, V_MC + qb, t))
        for x in xs:
            A.e("v_sub_f32 v%d, v%d, v%d" % (x, x, t))
        A.e("v_mul_f32 v%d, v%d, v%d" % (V_L + qb, V_L + qb, al))
        for db in range(8):
            k, b = Oloc(db, qb)
            for r in range(16):
                if k == "v":
                    A.e("v_mul_f32 v%d, v%d, v%d" % (b + r, b + r, al))
                else:
                    tt = V_T + (r % 2)
                    A.e("v_accvgpr_read_b32 v%d, a%d" % (tt, b + r))
                    A.e("v_mul_f32 v%d, v%d, v%d" % (tt, tt, al))
                    A.e("v_accvgpr_write_b32 a%d, v%d" % (b + r, tt))
    A.e("s_nop 1")
    A.e("s_setpc_b64 s[%d:%d]" % (S_RET, S_RET + 1))

def epilogue_stream(sq, gate):
    st = []
    WA = Oloc(0, 0)[1] + 8
    RD = [Oloc(1, 0)[1], Oloc(1, 1)[1]]
    AT = Oloc(0, 1)[1]
    def inv():
        for qb in range(2):
            A.e("v_mov_b32 v%d, v%d" % (V_T, V_L + qb))
            A.e("s_nop 1")
            A.e("v_permlane32_swap_b32 v%d, v%d" % (V_L + qb, V_T))
            A.e("s_nop 1")
            A.e("v_add_f32 v%d, v%d, v%d" % (V_T, V_T, V_L + qb))
            A.e("v_rcp_f32 v%d, v%d" % (V_INV + qb, V_T))
    st.append((14, inv, 0))
    def addr1():
        lane_id(V_T + 1)
        A.e("v_lshrrev_b32 v%d, 3, v%d" % (V_T, V_T + 1))
        A.e("v_and_b32 v%d, 7, v%d" % (V_T + 1, V_T + 1))
        A.e("v_lshlrev_b32 v%d, 9, v%d" % (V_RA, V_T))
        A.e("v_lshl_add_u32 v%d, v%d, 4, v%d" % (V_OST, V_T + 1, V_RA))
        A.e("v_xor_b32 v%d, v%d, v%d" % (V_T + 1, V_T + 1, V_T))
        A.e("v_lshlrev_b32 v%d, 7, v%d" % (V_T, V_T))
        A.e("v_lshl_add_u32 v%d, v%d, 4, v%d" % (V_T, V_T + 1, V_T))
        A.e("v_add_u32 v%d, s%d, v%d" % (V_RA, S_STG, V_T))
    st.append((10, addr1, 0))
    def addr2():
        lane_id(WA + 7)
        A.e("v_and_b32 v%d, 31, v%d" % (V_T, WA + 7))
        A.e("v_lshrrev_b32 v%d, 5, v%d" % (V_T + 1, WA + 7))
        A.e("v_lshlrev_b32 v%d, 7, v%d" % (WA + 7, V_T))
        A.e("v_lshl_add_u32 v%d, v%d, 3, v%d" % (WA + 7, V_T + 1, WA + 7))
        A.e("v_add_u32 v%d, s%d, v%d" % (WA + 7, S_STG, WA + 7))
        A.e("v_and_b32 v%d, 7, v%d" % (V_T, V_T))
        for c in range(8):
            A.e("v_xor_b32 v%d, %d, v%d" % (V_T + 1, c, V_T))
            A.e("v_lshl_add_u32 v%d, v%d, 4, v%d" % (WA + c, V_T + 1, WA + 7))
    def rdback(b):
        half = b % 2
        def f():
            A.wait_ds([("W", b)])
            for k in range(4):
                A.ds(("R", b), "ds_read_b128 %s, v%d offset:%d" % (vr(RD[half] + 4 * k, 4), V_RA, half * 4096 + k * 1024))
        return (5, f)
    def store(b):
        dp, qb = b // 2, b % 2
        half = b % 2
        out = []
        for k in range(4):
            def f(k=k):
                A.e("s_add_u32 s%d, s%d, 0x%x" % (S_T0, sq, qb * 16384 + dp * 128 + k * 4096))
                if k == 0: A.wait_ds([("R", b)])
                A.vmem("O", "buffer_store_dwordx4 %s, v%d, s[20:23], s%d offen offset:0 %s" % (vr(RD[half] + 4 * k, 4), V_OST, S_T0, NTO))
            out.append((3, f))
        return out
    for b in range(8):
        dp, qb = b // 2, b % 2
        half = b % 2
        ready = 8 * dp + 7 + 4
        for dd in range(2):
            db = 2 * dp + dd
            k, ob = Oloc(db, qb)
            if k == "a":
                for r in range(16):
                    st.append((1, "v_accvgpr_read_b32 v%d, a%d" % (AT + r, ob + r), ready))
                base = AT
            else:
                base = ob
            for z in range(8):
                def mul2(z=z, base=base, qb=qb):
                    if FLUSHING[0]:
                        A.e("v_pk_mul_f32 %s, %s, %s op_sel:[0,%d] op_sel_hi:[1,%d]" % (vr(base + 2 * z, 2), vr(base + 2 * z, 2), vr(V_INV, 2), qb, qb))
                    else:
                        A.e("v_mul_f32 v%d, v%d, v%d" % (base + 2 * z, base + 2 * z, V_INV + qb))
                        A.e("v_mul_f32 v%d, v%d, v%d" % (base + 2 * z + 1, base + 2 * z + 1, V_INV + qb))
                st.append((2, mul2, ready))
            for z in range(8):
                st.append((1, "v_cvt_pk_bf16_f32 v%d, v%d, v%d" % (base + z, base + 2 * z, base + 2 * z + 1), ready))
            if b == 0 and dd == 0:
                st.append((24, addr2, ready))
            for z in range(4):
                def w(z=z, base=base, dd=dd, b=b, half=half):
                    A.ds(("W", b), "ds_write_b64 v%d, %s offset:%d" % (WA + 4 * dd + z, vr(base + 2 * z, 2), half * 4096))
                st.append((1, w, gate if gate else ready))
            if dd == 0 and b >= 1:
                st.append(rdback(b - 1))
            if dd == 1 and b >= 1:
                st += store(b - 1)
    st.append(rdback(7))
    st += store(7)
    return Stream(st)

def shift_tags(q, d):
    return [(t[0], t[1] + d) if isinstance(t, tuple) and t[0] in ("K", "V") else t for t in q]

BASES_B = [(S_STG, 0), (S_STG, 4096), (S_QL0, 0), (S_QL1, 0)]
ORD_N = pv_order(False)
ORD_D = pv_order(True)

def mkbar(need, full_lds=False):
    def f():
        if full_lds: A.wait_ds_all()
        A.wait_vm(need)
        A.e("s_barrier")
    return f

def phase2(j, inloop=False):
    T = j
    pre, post = [], []
    early = []
    need = []
    if j + 2 <= 15: need.append(("K", T + 2))
    need.append(("V", T + 1))
    BAR = 10
    if inloop:
        post += dma_v(T + 3) + dma_ktype(T + 5, 2 + (j + 1) % 2)
    elif j == 0:
        post += dma_v(3) + dma_k(5)
    elif j == 13:
        def ql():
            A.e("s_sub_u32 s%d, s%d, 0x8000" % (S_QL0, S_KW))
            A.e("s_and_b32 s%d, s%d, 0xffff" % (S_QL0, S_QL0))
            A.e("s_add_u32 s%d, s%d, s%d" % (S_QL0, S_QL0, S_LDSW))
            A.e("s_sub_u32 s%d, s%d, 0x4000" % (S_QL1, S_KW))
            A.e("s_and_b32 s%d, s%d, 0xffff" % (S_QL1, S_QL1))
            A.e("s_add_u32 s%d, s%d, s%d" % (S_QL1, S_QL1, S_LDSW))
        early = [ql] + dma_q("Q1", S_QN, 0, 0, ('stg', 0)) + dma_q("Q1", S_QN, 0, 1, ('stg', 4096))
        post += dma_v(16) + dma_k(16)
    elif j == 14:
        pre = [(1, lambda: A.wait_vm(["Q1"]))] + q_reads(0, BASES_B)
        post += [lambda: A.wait_ds(["Q"])]
        post += dma_q("Q2", S_QN, 1, 0, ('stg', 0)) + dma_q("Q2", S_QN, 1, 1, ('stg', 4096))
        post += dma_q("Q2", S_QN, 1, 2, ('sg', S_QL0)) + dma_q("Q2", S_QN, 1, 3, ('sg', S_QL1))
    F = Filler()
    spre = Stream(pre)
    dst = dmastream(early, 0)
    dst.items += dmastream(post, BAR + 1).items
    sadv = Stream(adv_k(1) if j <= 13 else [], 0 if j != 14 else 0)
    def bar():
        flush([spre])
        if inloop:
            A.e("s_waitcnt vmcnt(12)"); A.vm = A.vm[-12:]
            A.e("s_barrier")
        elif j == 0:
            A.e("s_waitcnt vmcnt(8)"); A.vm = A.vm[-8:]
            A.e("s_barrier")
        else:
            mkbar(need)()
    streams = [dst, sadv, spre, Stream(softmaxA_stream((T + 1) % 2), 6)]
    def chk(m):
        if m == 27: flush([sadv])
    pv_group(F, T, ORD_N, streams, bar=(BAR, bar), kpre=(T + 2 if j + 2 <= 15 else None), first=(j == 0), hook=chk)
    flush(streams)
    check_slow((T + 1) % 2)

def phase1(j):
    T = j
    F = Filler()
    sadv = Stream(adv_v())
    streams = [sadv, Stream(softmaxB_stream(T % 2))]
    def chk(m):
        if m == 23: flush([sadv])
    qk_group(F, T + 1, (T + 1) % 2, streams, vpre=(T, ORD_N), hook=chk)
    flush(streams)

def gen_loop():
    lds0 = list(A.lds)
    A.e("s_mov_b32 s%d, 0" % S_CNT)
    A.label("L_loop")
    for j in (1, 2):
        phase1(j); phase2(j, inloop=True)
    assert A.lds == lds0, (A.lds, lds0)
    A.e("s_add_u32 s%d, s%d, 1" % (S_CNT, S_CNT))
    A.e("s_cmp_lt_u32 s%d, 6" % S_CNT)
    A.e("s_cbranch_scc1 L_loop")
    A.vm = [("V", 14)] * 4 + ["Q1"] * 4 + [("V", 15)] * 4 + ["Q1"] * 4

def head_of_unit(u, F, estream, extra_dma):
    T0 = 16 * u
    g0 = F.g
    streams = []
    d1 = dmastream(extra_dma, g0)
    streams.append(d1)
    if estream: streams.append(estream)
    def chk(m):
        if m == 24:
            flush([Stream(adv_k(1))])
    qk_group(F, T0, 0, streams, bar=(27, mkbar([("K", T0 + 1)], full_lds=True)), kpre=T0 + 1, hook=chk)
    g1 = F.g
    post = (dma_v(2) if u == 0 else []) + dma_k(T0 + 4)
    sm = Stream(init_stream(0) + softmaxB_stream(0), g1 + 3)
    d1.items += dmastream(post, g1).items
    streams = [d1, sm]
    if estream: streams.append(estream)
    qk_group(F, T0 + 1, 1, streams, vpre=(T0, ORD_N), bar=(22, mkbar([("V", T0)])))
    flush(streams)
    A.e("s_nop 1")

def tail_of_unit(last):
    T = 15
    flush([Stream(adv_v())])
    for pos in range(4):
        ks, db = ORD_D[pos]
        vread(T, pos, ks, db, 0); vread(T, pos, ks, db, 1)
    sm = Stream(softmaxB_stream(1))
    extra = [] if last else (dma_v(17) + dma_k(17))
    k = 0
    while sm.items:
        c, it, _ = sm.items.pop(0); A.e(it); k += 1
        if extra and k % 6 == 0:
            extra.pop(0)()
    emit_seq(extra)
    A.e("s_nop 1")
    F = Filler()
    if last:
        A.wait_vm(["Q2"])
        E = epilogue_stream(S_QOFF, None)
        pv_group(F, T, ORD_D, [E])
        A.e("s_nop 15")
        flush([E])
        return
    QAT = 20
    sadv = Stream(adv_k(3))
    qs = Stream([(1, lambda: A.wait_vm(["Q2"]))] + q_reads(1, BASES_B) + [(1, lambda: A.wait_ds(["Q"]))], QAT)
    E = epilogue_stream(S_QOFF, lambda: not qs.items)
    streams = [sadv, dmastream(dma_v(18), 11), qs, E]
    def chk(m):
        if m == 12: flush([sadv])
        if m == 24: flush([Stream(adv_v())])
    pv_group(F, T, ORD_D, streams, bar=(10, mkbar([("K", 16)])), kpre=16, hook=chk)
    flush([streams[1], qs])
    stamp()
    head_of_unit(1, F, E, dma_k(18) + dma_k(19))
    A.e("s_mov_b32 s%d, s%d" % (S_QOFF, S_QN))
    A.e("s_add_u32 s%d, s%d, 0x2000000" % (S_QN, S_QN))
    A.e("s_mov_b32 s%d, 1" % S_U)
    A.e("s_branch L_body")

def body():
    lds_entry = list(A.lds)
    A.label("L_body")
    phase2(0)
    gen_loop()
    for j in (13, 14):
        phase1(j); phase2(j)
    A.e("s_cmp_eq_u32 s%d, 1" % S_U)
    A.e("s_cbranch_scc1 L_last")
    vm, lds = list(A.vm), list(A.lds)
    tail_of_unit(False)
    assert A.lds == lds_entry[len(lds_entry) - len(A.lds):], (A.lds, lds_entry)
    A.label("L_last")
    A.vm, A.lds = vm, lds
    tail_of_unit(True)

hdr = open("standalone__gqa_softmax__near_ridge.s.ref").read().split("\n")
head = []
for l in hdr:
    if l.startswith("; @launch"):
        head.append("; @launch grid=(256,1,1) block=(256,1,1) lds=163840")
    elif l.startswith(";"):
        head.append(l)
    else:
        break

A.e("s_cmp_ge_u32 s2, 256")
A.e("s_cbranch_scc1 L_end")
A.e("s_load_dwordx4 s[4:7], s[0:1], 0")
A.e("s_load_dwordx4 s[36:39], s[0:1], 16")
if STAMPS:
    A.e("s_load_dwordx2 s[100:101], s[0:1], %d" % (32 if DBG else 40))
stamp()
A.e("s_and_b32 s42, s2, 7")
A.e("s_lshr_b32 s43, s2, 3")
A.e("s_and_b32 s44, s43, 1")
A.e("s_lshr_b32 s43, s43, 1")
A.e("s_lshl_b32 s42, s42, 4")
A.e("s_add_u32 s42, s42, s43")
A.e("s_lshl_b32 s45, s42, 1")
A.e("s_add_u32 s45, s45, s44")
A.e("v_lshrrev_b32 v33, 6, v0")
A.e("v_and_b32 v32, 63, v0")
A.e("s_nop 0")
A.e("v_readfirstlane_b32 s%d, v33" % S_WAVE)
A.e("s_mov_b32 s%d, %s" % (S_C, f32hex(C_SCALE)))
A.e("s_nop 2")
A.e("s_lshl_b32 s%d, s%d, 12" % (S_LDSW, S_WAVE))
A.e("s_lshl_b32 s%d, s%d, 13" % (S_STG, S_WAVE))
A.e("s_add_u32 s%d, s%d, 0x%x" % (S_STG, S_STG, STG))
A.e("s_lshl_b32 s%d, s42, 18" % S_KOFF)
A.e("s_add_u32 s%d, s%d, s%d" % (S_KOFF, S_KOFF, S_LDSW))
A.e("s_mov_b32 s%d, s%d" % (S_VOFF, S_KOFF))
A.e("s_lshl_b32 s%d, s45, 17" % S_QOFF)
A.e("s_lshl_b32 s43, s%d, 15" % S_WAVE)
A.e("s_add_u32 s%d, s%d, s43" % (S_QOFF, S_QOFF))
A.e("s_add_u32 s%d, s%d, 0x2000000" % (S_QN, S_QOFF))
A.e("s_and_b32 s46, s%d, 1" % S_WAVE)
A.e("s_lshl_b32 s46, s46, 7")
A.e("s_xor_b32 s47, s46, 0x80")
A.e("v_and_b32 v33, 31, v32")
A.e("v_lshrrev_b32 v34, 5, v32")
A.e("v_lshlrev_b32 v35, 9, v33")
A.e("v_and_b32 v36, 15, v33")
A.e("v_xor_b32 v36, v36, v34")
for f in range(8):
    A.e("v_xor_b32 v37, %d, v36" % (2 * f))
    A.e("v_lshl_add_u32 v%d, v37, 4, v35" % (V_ADK + f))
A.e("s_and_b32 s43, s%d, 1" % S_WAVE)
A.e("s_lshl_b32 s43, s43, 3")
A.e("v_lshlrev_b32 v35, 9, v34")
A.e("v_xor_b32 v36, v33, v34")
A.e("v_xor_b32 v36, s43, v36")
for k in range(4):
    A.e("v_xor_b32 v37, %d, v36" % (2 * k))
    A.e("v_lshl_add_u32 v%d, v37, 4, v35" % (V_OFFK + k))
A.e("v_lshlrev_b32 v36, 2, v34")
A.e("v_xor_b32 v36, v33, v36")
for k2 in range(2):
    A.e("v_xor_b32 v37, %d, v36" % (8 * k2))
    A.e("v_lshl_add_u32 v%d, v37, 4, v35" % (V_OFFV + k2))
A.e("v_bfe_u32 v35, v32, 2, 2")
A.e("v_lshl_add_u32 v36, v34, 2, v35")
A.e("v_lshlrev_b32 v36, 9, v36")
A.e("v_add_u32 v36, 0x10000, v36")
A.e("v_bfe_u32 v37, v32, 4, 1")
A.e("v_lshl_add_u32 v36, v37, 5, v36")
A.e("v_and_b32 v37, 3, v32")
A.e("v_lshl_add_u32 v36, v37, 3, v36")
for f in range(4):
    A.e("v_xor_b32 v37, %d, v35" % f)
    A.e("v_lshl_add_u32 v%d, v37, 6, v36" % (V_ADV + f))
A.e("s_waitcnt lgkmcnt(0)")
for (d, p) in ((8, 4), (12, 6), (16, 36), (20, 38)):
    A.e("s_mov_b32 s%d, s%d" % (d, p))
    A.e("s_and_b32 s%d, s%d, 0xffff" % (d + 1, p + 1))
    A.e("s_mov_b32 s%d, 0x4000000" % (d + 2))
    A.e("s_mov_b32 s%d, 0x20000" % (d + 3))
A.e("s_mov_b32 s35, s46")
A.e("s_mov_b32 s36, s47")
for r in (S_KW, S_VW, S_KR, S_VR, S_U):
    A.e("s_mov_b32 s%d, 0" % r)
A.e("s_add_u32 s%d, s%d, 0x10000" % (S_LDSV, S_LDSW))
A.e("s_mov_b32 s%d, 0x4000000" % (S_SRD + 2))
A.e("s_mov_b32 s%d, 0x20000" % (S_SRD + 3))
A.e("s_mov_b32 s%d, s12" % S_SRD)
A.e("s_mov_b32 s%d, s13" % (S_SRD + 1))
STAG = int(os.environ.get("STAG", "0"))
A.e("s_lshr_b32 s43, s2, 4")
A.e("s_and_b32 s43, s43, 1")
def gwait(n):
    A.e("s_cmp_eq_u32 s43, 0")
    A.e("s_cbranch_scc1 L_gw%d" % n)
    A.e("s_waitcnt vmcnt(0)")
    A.label("L_gw%d" % n)
emit_seq(dma_k(0))
if STAG >= 2: gwait(0)
emit_seq(dma_q("Q1", S_QOFF, 0, 0, ('stg', 0)) + dma_q("Q1", S_QOFF, 0, 1, ('stg', 4096)))
if STAG >= 3: gwait(1)
emit_seq(dma_q("Q1", S_QOFF, 0, 2, ('slot', 32768)) + dma_q("Q1", S_QOFF, 0, 3, ('slot', 49152)))
if STAG >= 1: gwait(2)
for p in range(4):
    emit_seq(dma_q("Q2", S_QOFF, 1, p, ('slot', 65536 + p * 16384)))
    if STAG >= 3 and p == 1: gwait(3)
emit_seq(dma_k(1))
A.wait_vm(["Q1"])
for c, f in q_reads(0, [(S_STG, 0), (S_STG, 4096), (S_LDSW, 32768), (S_LDSW, 49152)]): f()
A.wait_vm(["Q2"])
for c, f in q_reads(1, [(S_LDSW, 65536 + p * 16384) for p in range(4)]): f()
A.wait_ds(["Q"])
A.e("s_barrier")
stamp()
for s in range(4):
    kread(0, s)
F0 = Filler()
head_of_unit(0, F0, None, dma_v(0) + dma_k(2) + dma_v(1) + dma_k(3))
stamp()
body()
if STAMPS:
    stamp()
    A.e("s_waitcnt vmcnt(0)")
    stamp()
    n = nstamp[0]
    A.e("s_mov_b32 s8, s100")
    A.e("s_and_b32 s9, s101, 0xffff")
    if DBG:
        A.e("s_mov_b32 s10, 256")
        A.e("s_mov_b32 s11, 0x20000")
        A.e("s_cmp_lg_u32 s2, 77")
        A.e("s_cbranch_scc1 L_end")
        A.e("s_cmp_lg_u32 s%d, 0" % S_WAVE)
        A.e("s_cbranch_scc1 L_end")
        A.e("v_mov_b32 v1, 0")
        for i in range(1, n // 2):
            A.e("s_sub_u32 s32, s%d, s64" % (64 + 4 * i))
            A.e("v_mov_b32 v2, s32")
            A.e("buffer_store_dword v2, v1, s[8:11], 0 offen offset:%d" % (4 * (i - 1)))
            A.e("s_nop 1")
        A.e("s_sub_u32 s32, s%d, s66" % (66 + 4 * (n // 2 - 1)))
        A.e("v_mov_b32 v2, s32")
        A.e("buffer_store_dword v2, v1, s[8:11], 0 offen offset:%d" % (4 * (n // 2 - 1)))
    else:
        A.e("s_mov_b32 s10, 0x1000000")
        A.e("s_mov_b32 s11, 0x20000")
        A.e("s_lshl_b32 s32, s2, 2")
        A.e("s_add_u32 s32, s32, s%d" % S_WAVE)
        A.e("s_mul_i32 s32, s32, %d" % (n * 8))
        A.e("v_mov_b32 v1, 0")
        for i in range(n):
            A.e("v_mov_b32 v2, s%d" % (64 + 2 * i))
            A.e("v_mov_b32 v3, s%d" % (65 + 2 * i))
            A.e("buffer_store_dwordx2 v[2:3], v1, s[8:11], s32 offen offset:%d" % (8 * i))
            A.e("s_nop 1")
    print("nstamps", n)
A.label("L_end")
A.e("s_endpgm")
slow_block(0)
slow_block(1)

body = "\n".join(A.lines)
text = "\n".join(head) + """
.amdgcn_target "amdgcn-amd-amdhsa--gfx950"
.text
.globl %s
.p2align 8
.type %s,@function
%s:
%s
.section .rodata,"a"
.p2align 6
.amdhsa_kernel %s
  .amdhsa_next_free_vgpr 512
  .amdhsa_next_free_sgpr 102
  .amdhsa_accum_offset 256
  .amdhsa_group_segment_fixed_size 0
  .amdhsa_kernarg_size 48
  .amdhsa_user_sgpr_count 2
  .amdhsa_user_sgpr_kernarg_segment_ptr 1
  .amdhsa_system_sgpr_workgroup_id_x 1
.end_amdhsa_kernel
""" % (NAME, NAME, NAME, body, NAME)
open(OUT, "w").write(text)
print("wrote", OUT, len(A.lines), "lines", len(text), "bytes")
```

```python
import sys, struct, os

OUT = sys.argv[1] if len(sys.argv) > 1 else "standalone__gqa_softmax__near_ridge.s"
STAMPS = len(sys.argv) > 2 and sys.argv[2] in ("stamps", "dbg")
DBG = len(sys.argv) > 2 and sys.argv[2] == "dbg"
NAME = "standalone__gqa_softmax__near_ridge_kernel"
NT = os.environ.get("NT", "nt")
NTO = os.environ.get("NTO", "")
BUDGET = float(os.environ.get("BUDGET", "5.0"))

def f32hex(x):
    return "0x%08x" % struct.unpack("<I", struct.pack("<f", x))[0]

C_SCALE = 0.0625 * 1.4426950408889634

V_OFFK = 0
V_OFFV = 4
V_ADK = 6
V_ADV = 14
V_MC = 18
V_L = 20
V_MX = 22
V_RA = 23
V_INV = 24
V_OST = 26
V_T = 27
V_S = 32
A_Q = 0
A_KF = 128
A_VF = 144

S_KOFF, S_VOFF, S_LDSW, S_CNT, S_C, S_QOFF, S_WAVE, S_QN, S_T0, S_T1, S_STG, S_T2 = 24, 25, 26, 27, 28, 29, 30, 31, 32, 33, 34, 37
S_RET = 40
STG = 131072

def Sreg(buf, qb, r=0): return V_S + 32 * buf + 16 * qb + r
def vr(a, n): return "v[%d:%d]" % (a, a + n - 1)
def ar(a, n): return "a[%d:%d]" % (a, a + n - 1)
def Qop(qb, s): return ar(A_Q + 64 * qb + 4 * s, 4)
def Oloc(db, qb):
    n = db * 2 + qb
    return ("v", 96 + 16 * n) if n < 10 else ("a", 160 + 16 * (n - 10))
def Oop(db, qb):
    k, b = Oloc(db, qb)
    return "%s[%d:%d]" % (k, b, b + 15)

class Asm:
    def __init__(self):
        self.lines = []
        self.lds = []
        self.vm = []
    def e(self, s):
        self.lines.append("    " + s)
    def label(self, s):
        self.lines.append(s + ":")
    def ds(self, tag, s):
        self.e(s); self.lds.append(tag)
    def vmem(self, tag, s):
        self.e(s); self.vm.append(tag)
    def wait_ds(self, tags, force=False):
        if not isinstance(tags, list): tags = [tags]
        idx = [i for i, t in enumerate(self.lds) if t in tags]
        if not idx:
            if not force: return
            n = min(len(self.lds), 15)
        else:
            n = len(self.lds) - 1 - idx[-1]
        n = min(n, 15)
        self.e("s_waitcnt lgkmcnt(%d)" % n)
        self.lds = self.lds[len(self.lds) - n:] if n else []
    def wait_ds_all(self):
        self.e("s_waitcnt lgkmcnt(0)"); self.lds = []
    def wait_vm(self, tags, force=True):
        idx = [i for i, t in enumerate(self.vm) if t in tags]
        if not idx:
            if not force: return
            n = len(self.vm)
        else:
            n = len(self.vm) - 1 - idx[-1]
        n = min(n, 63)
        self.e("s_waitcnt vmcnt(%d)" % n)
        self.vm = self.vm[len(self.vm) - n:] if n else []

A = Asm()
nstamp = [0]
def stamp():
    if not STAMPS: return
    i = nstamp[0]; nstamp[0] += 2
    A.e("s_memrealtime s[%d:%d]" % (50 + 2 * i, 51 + 2 * i))
    A.e("s_memtime s[%d:%d]" % (52 + 2 * i, 53 + 2 * i))
    A.e("s_waitcnt lgkmcnt(0)")
    A.lds = []

site_cnt = [0]

def kslot(T):
    u, t = T // 16, T % 16
    return (t + 2 * u) % 4
def vslot(T):
    return T % 4

def kread(T, s):
    if os.environ.get("NOLDS") and T > 1: return
    e_, f = s // 8, s % 8
    A.ds(("K", s), "ds_read_b128 %s, v%d offset:%d" % (ar(A_KF + 4 * (s % 4), 4), V_ADK + f, kslot(T) * 16384 + e_ * 256))

def vread(T, pos, ks, db, t):
    if os.environ.get("NOLDS") and T > 0: return
    e_, f = db // 4, db % 4
    A.ds(("V", pos), "ds_read_b64_tr_b16 %s, v%d offset:%d" % (
        ar(A_VF + 4 * (pos % 4) + 2 * t, 2), V_ADV + f, vslot(T) * 16384 + ks * 8192 + t * 4096 + e_ * 256))

def pv_order(dbmajor):
    if dbmajor:
        return [(ks, db) for db in range(8) for ks in range(2)]
    return [(ks, db) for ks in range(2) for db in range(8)]

def dma_k(T):
    out = []
    if T == 16:
        out.append(lambda: A.e("s_add_u32 s%d, s%d, 0x%x" % (S_KOFF, S_KOFF, 127 * 262144)))
    out.append(lambda: A.e("s_add_u32 m0, s%d, 0x%x" % (S_LDSW, kslot(T) * 16384)))
    for k in range(4):
        def f(k=k):
            A.vmem(("K", T), "buffer_load_dwordx4 v%d, s[12:15], s%d offen offset:%d %s lds" % (V_OFFK + k, S_KOFF, k * 1024, NT))
        out.append(f)
    out.append(lambda: A.e("s_add_u32 s%d, s%d, 0x4000" % (S_KOFF, S_KOFF)))
    return out

def dma_v(T):
    out = []
    if T == 16:
        out.append(lambda: A.e("s_add_u32 s%d, s%d, 0x%x" % (S_VOFF, S_VOFF, 127 * 262144)))
    out.append(lambda: A.e("s_add_u32 m0, s%d, 0x%x" % (S_LDSW, 65536 + vslot(T) * 16384)))
    for k in range(4):
        def f(k=k):
            A.vmem(("V", T), "buffer_load_dwordx4 v%d, s[16:19], s%d offen offset:%d %s lds" % (V_OFFV + (k % 2), S_VOFF, k * 1024, NT))
        out.append(f)
    out.append(lambda: A.e("s_add_u32 s%d, s%d, 0x4000" % (S_VOFF, S_VOFF)))
    return out

def dma_q(tag, sq, qb, p, dest):
    out = []
    def pre():
        A.e("s_add_u32 s%d, s%d, 0x%x" % (S_T2, sq, qb * 16384 + p * 4096))
        if dest[0] == 'stg':
            A.e("s_add_u32 m0, s%d, 0x%x" % (S_STG, dest[1]))
        else:
            A.e("s_add_u32 m0, s%d, 0x%x" % (S_LDSW, dest[1]))
    out.append(pre)
    for k in range(4):
        def f(k=k):
            A.e("v_xor_b32 v%d, s%d, v%d" % (V_T + 4, 35 + (p % 2), V_OFFK + k))
            A.vmem(tag, "buffer_load_dwordx4 v%d, s[8:11], s%d offen offset:%d %s lds" % (V_T + 4, S_T2, k * 1024, NT))
        out.append(f)
    return out

def emit_seq(seq):
    for f in seq:
        f()
        A.e("s_nop 0")

def lane_id(dst):
    A.e("v_mbcnt_lo_u32_b32 v%d, -1, 0" % dst)
    A.e("v_mbcnt_hi_u32_b32 v%d, -1, v%d" % (dst, dst))

def q_delta(bases):
    d = V_T + 3
    t = V_T + 2
    lane_id(t)
    A.e("v_bfe_u32 v%d, v%d, 3, 2" % (t, t))
    for p in range(4):
        sg, c = bases[p]
        A.e("s_add_u32 s%d, s%d, 0x%x" % (S_T0, sg, (c - p * 4096) & 0xffffffff))
        if p == 0:
            A.e("v_mov_b32 v%d, s%d" % (d, S_T0))
        else:
            A.e("v_cmp_eq_u32 vcc, %d, v%d" % (p, t))
            A.e("v_mov_b32 v%d, s%d" % (V_T + 1, S_T0))
            A.e("s_nop 0")
            A.e("v_cndmask_b32 v%d, v%d, v%d, vcc" % (d, d, V_T + 1))

def q_reads(qb, bases):
    out = [(12, lambda: q_delta(bases))]
    for s in range(16):
        def f(s=s):
            e_, ff = s // 8, s % 8
            A.e("v_add_u32 v%d, v%d, v%d" % (V_T + 2, V_ADK + ff, V_T + 3))
            A.ds("Q", "ds_read_b128 %s, v%d offset:%d" % (Qop(qb, s), V_T + 2, e_ * 256))
        out.append((2, f))
    return out

def softmaxB_stream(buf):
    st = []
    if os.environ.get("NOSM"): return st
    for ks in range(2):
        for qb in range(2):
            for i in range(4):
                r0 = Sreg(buf, qb, 8 * ks + 2 * i)
                dst = Sreg(buf, qb, 8 * ks + i)
                st.append((2, "v_exp_f32 v%d, v%d" % (r0, r0)))
                st.append((2, "v_exp_f32 v%d, v%d" % (r0 + 1, r0 + 1)))
                st.append((1, "v_add_f32 v%d, v%d, v%d" % (V_L + qb, V_L + qb, r0)))
                st.append((1, "v_add_f32 v%d, v%d, v%d" % (V_L + qb, V_L + qb, r0 + 1)))
                st.append((1, "v_cvt_pk_bf16_f32 v%d, v%d, v%d" % (dst, r0, r0 + 1)))
    return st

def softmaxA_stream(buf):
    if os.environ.get("NOSM"): return [(1, "v_mov_b32 v%d, 0" % V_MX)]
    ops = []
    xs = []
    for qb in range(2):
        for r in range(16):
            x = Sreg(buf, qb, r)
            ops.append("v_fma_f32 v%d, v%d, s%d, -v%d" % (x, x, S_C, V_MC + qb))
            xs.append(x)
    mx = [(2, "v_max3_f32 v%d, v%d, v%d, v%d" % (V_MX, xs[0], xs[1], xs[2]))]
    i = 3
    while i < 32:
        a = xs[i]; b = xs[i + 1] if i + 1 < 32 else xs[i]
        mx.append((min(i + 1, 31), "v_max3_f32 v%d, v%d, v%d, v%d" % (V_MX, V_MX, a, b)))
        i += 2
    res = []
    mi = 0
    for k, o in enumerate(ops):
        res.append((1, o))
        while mi < len(mx) and mx[mi][0] <= k - 1:
            res.append((1, mx[mi][1])); mi += 1
    while mi < len(mx):
        res.append((1, mx[mi][1])); mi += 1
    return res

def init_stream(buf):
    st = []
    t, t2 = V_MX, V_T + 1
    for qb in range(2):
        xs = [Sreg(buf, qb, r) for r in range(16)]
        for x in xs:
            st.append((1, "v_mul_f32 v%d, s%d, v%d" % (x, S_C, x)))
        st.append((1, "v_max3_f32 v%d, v%d, v%d, v%d" % (t, xs[0], xs[1], xs[2])))
        for i in range(3, 15, 2):
            st.append((1, "v_max3_f32 v%d, v%d, v%d, v%d" % (t, t, xs[i], xs[i + 1])))
        def fin(qb=qb, xs=xs):
            A.e("v_max_f32 v%d, v%d, v%d" % (t, t, xs[15]))
            A.e("v_mov_b32 v%d, v%d" % (t2, t))
            A.e("s_nop 1")
            A.e("v_permlane32_swap_b32 v%d, v%d" % (t, t2))
            A.e("s_nop 1")
            A.e("v_max_f32 v%d, v%d, v%d" % (V_MC + qb, t, t2))
            A.e("v_mov_b32 v%d, 0" % (V_L + qb))
        st.append((9, fin))
        for x in xs:
            st.append((1, "v_sub_f32 v%d, v%d, v%d" % (x, x, V_MC + qb)))
    return st

class Stream:
    def __init__(self, items, earliest=0, maxper=99):
        self.items = [(it[0], it[1], (it[2] if len(it) > 2 else earliest)) for it in items]
        self.maxper = maxper
    def __bool__(self): return bool(self.items)

class Filler:
    def __init__(self):
        self.credit = 0.0
        self.g = 0
    def gap(self, used_fixed, streams):
        self.credit += BUDGET - used_fixed
        cnt = {}
        progress = True
        while progress:
            progress = False
            for st in streams:
                if st.items and (st.items[0][2]() if callable(st.items[0][2]) else st.items[0][2] <= self.g) and cnt.get(id(st), 0) < st.maxper and \
                   (st.items[0][0] <= self.credit + 1e-9 or (st.items[0][0] > BUDGET and self.credit > 0)):
                    c, it, _ = st.items.pop(0)
                    if callable(it): it()
                    else: A.e(it)
                    self.credit -= c
                    cnt[id(st)] = cnt.get(id(st), 0) + 1
                    progress = True
                    break
        if self.credit > BUDGET: self.credit = BUDGET
        self.g += 1

FLUSHING = [False]
def flush(streams, nop_between=False):
    FLUSHING[0] = True
    _flush(streams)
    FLUSHING[0] = False
def _flush(streams):
    for st in streams:
        while st.items:
            c, it, _ = st.items.pop(0)
            if st.maxper == 1: A.e("s_nop 0")
            if callable(it): it()
            else: A.e(it)

def dmastream(seq, earliest=0):
    return Stream([(1, f) for f in seq], earliest, maxper=1)

def qk_group(F, Tk, buf, streams, vpre=None, bar=None, kpre=None):
    for m in range(32):
        s, qb = m // 2, m % 2
        if qb == 0:
            A.wait_ds(("K", s), force=True)
        c = "0" if s == 0 else vr(Sreg(buf, qb), 16)
        A.e("v_mfma_f32_32x32x16_bf16 %s, %s, %s, %s" % (vr(Sreg(buf, qb), 16), ar(A_KF + 4 * (s % 4), 4), Qop(qb, s), c))
        used = 0
        if qb == 1:
            used += 1
            if s + 4 < 16:
                kread(Tk, s + 4); used += 1
        if vpre and m >= 24:
            pos = (m - 24) // 2
            ks, db = vpre[1][pos]
            vread(vpre[0], pos, ks, db, (m - 24) % 2); used += 1
        if bar and m == bar[0]:
            bar[1](); used += 2
        if kpre is not None:
            for s2 in {28: [0, 1], 30: [2], 31: [3]}.get(m, []):
                kread(kpre, s2); used += 1
        F.gap(used, streams)

def pv_group(F, T, order, streams, bar=None, kpre=None, first=False):
    cb = T % 2
    for m in range(32):
        pos, qb = m // 2, m % 2
        ks, db = order[pos]
        if qb == 0:
            A.wait_ds(("V", pos), force=True)
        c = "0" if (first and ks == 0) else Oop(db, qb)
        A.e("v_mfma_f32_32x32x16_bf16 %s, %s, %s, %s" % (Oop(db, qb), ar(A_VF + 4 * (pos % 4), 4), vr(Sreg(cb, qb, 8 * ks), 4), c))
        used = 0
        if qb == 1:
            used += 1
            if pos + 4 < 16:
                k2, d2 = order[pos + 4]
                vread(T, pos + 4, k2, d2, 0); vread(T, pos + 4, k2, d2, 1); used += 2
        if bar and m == bar[0]:
            bar[1](); used += 2
        if kpre is not None and m >= 28:
            kread(kpre, m - 28); used += 1
        F.gap(used, streams)

def check_slow(nb):
    site = site_cnt[0]; site_cnt[0] += 1
    A.e("v_cmp_lt_f32 vcc, 0x41000000, v%d" % V_MX)
    A.e("s_cbranch_vccz L_back_%d" % site)
    A.e("s_call_b64 s[%d:%d], L_slow_%d" % (S_RET, S_RET + 1, nb))
    A.label("L_back_%d" % site)

def slow_block(buf):
    A.label("L_slow_%d" % buf)
    A.e("s_nop 15")
    t, t2, al = V_T, V_T + 1, V_T + 2
    for qb in range(2):
        xs = [Sreg(buf, qb, r) for r in range(16)]
        A.e("v_max3_f32 v%d, v%d, v%d, v%d" % (t, xs[0], xs[1], xs[2]))
        for i in range(3, 15, 2):
            A.e("v_max3_f32 v%d, v%d, v%d, v%d" % (t, t, xs[i], xs[i + 1]))
        A.e("v_max_f32 v%d, v%d, v%d" % (t, t, xs[15]))
        A.e("v_mov_b32 v%d, v%d" % (t2, t))
        A.e("s_nop 1")
        A.e("v_permlane32_swap_b32 v%d, v%d" % (t, t2))
        A.e("s_nop 1")
        A.e("v_max3_f32 v%d, v%d, v%d, 0" % (t, t, t2))
        A.e("v_exp_f32 v%d, -v%d" % (al, t))
        A.e("v_add_f32 v%d, v%d, v%d" % (V_MC + qb, V_MC + qb, t))
        for x in xs:
            A.e("v_sub_f32 v%d, v%d, v%d" % (x, x, t))
        A.e("v_mul_f32 v%d, v%d, v%d" % (V_L + qb, V_L + qb, al))
        for db in range(8):
            k, b = Oloc(db, qb)
            for r in range(16):
                if k == "v":
                    A.e("v_mul_f32 v%d, v%d, v%d" % (b + r, b + r, al))
                else:
                    tt = V_T + (r % 2)
                    A.e("v_accvgpr_read_b32 v%d, a%d" % (tt, b + r))
                    A.e("v_mul_f32 v%d, v%d, v%d" % (tt, tt, al))
                    A.e("v_accvgpr_write_b32 a%d, v%d" % (b + r, tt))
    A.e("s_nop 1")
    A.e("s_setpc_b64 s[%d:%d]" % (S_RET, S_RET + 1))

def epilogue_stream(sq, gate):
    st = []
    WA = Oloc(0, 0)[1] + 8
    RD = [Oloc(1, 0)[1], Oloc(1, 1)[1]]
    AT = Oloc(0, 1)[1]
    def inv():
        for qb in range(2):
            A.e("v_mov_b32 v%d, v%d" % (V_T, V_L + qb))
            A.e("s_nop 1")
            A.e("v_permlane32_swap_b32 v%d, v%d" % (V_L + qb, V_T))
            A.e("s_nop 1")
            A.e("v_add_f32 v%d, v%d, v%d" % (V_T, V_T, V_L + qb))
            A.e("v_rcp_f32 v%d, v%d" % (V_INV + qb, V_T))
    st.append((14, inv, 0))
    def addr1():
        lane_id(V_T + 1)
        A.e("v_lshrrev_b32 v%d, 3, v%d" % (V_T, V_T + 1))
        A.e("v_and_b32 v%d, 7, v%d" % (V_T + 1, V_T + 1))
        A.e("v_lshlrev_b32 v%d, 9, v%d" % (V_RA, V_T))
        A.e("v_lshl_add_u32 v%d, v%d, 4, v%d" % (V_OST, V_T + 1, V_RA))
        A.e("v_xor_b32 v%d, v%d, v%d" % (V_T + 1, V_T + 1, V_T))
        A.e("v_lshlrev_b32 v%d, 7, v%d" % (V_T, V_T))
        A.e("v_lshl_add_u32 v%d, v%d, 4, v%d" % (V_T, V_T + 1, V_T))
        A.e("v_add_u32 v%d, s%d, v%d" % (V_RA, S_STG, V_T))
    st.append((10, addr1, 0))
    def addr2():
        lane_id(WA + 7)
        A.e("v_and_b32 v%d, 31, v%d" % (V_T, WA + 7))
        A.e("v_lshrrev_b32 v%d, 5, v%d" % (V_T + 1, WA + 7))
        A.e("v_lshlrev_b32 v%d, 7, v%d" % (WA + 7, V_T))
        A.e("v_lshl_add_u32 v%d, v%d, 3, v%d" % (WA + 7, V_T + 1, WA + 7))
        A.e("v_add_u32 v%d, s%d, v%d" % (WA + 7, S_STG, WA + 7))
        A.e("v_and_b32 v%d, 7, v%d" % (V_T, V_T))
        for c in range(8):
            A.e("v_xor_b32 v%d, %d, v%d" % (V_T + 1, c, V_T))
            A.e("v_lshl_add_u32 v%d, v%d, 4, v%d" % (WA + c, V_T + 1, WA + 7))
    def rdback(b):
        half = b % 2
        def f():
            A.wait_ds([("W", b)])
            for k in range(4):
                A.ds(("R", b), "ds_read_b128 %s, v%d offset:%d" % (vr(RD[half] + 4 * k, 4), V_RA, half * 4096 + k * 1024))
        return (5, f)
    def store(b):
        dp, qb = b // 2, b % 2
        half = b % 2
        out = []
        for k in range(4):
            def f(k=k):
                A.e("s_add_u32 s%d, s%d, 0x%x" % (S_T0, sq, qb * 16384 + dp * 128 + k * 4096))
                if k == 0: A.wait_ds([("R", b)])
                A.vmem("O", "buffer_store_dwordx4 %s, v%d, s[20:23], s%d offen offset:0 %s" % (vr(RD[half] + 4 * k, 4), V_OST, S_T0, NTO))
            out.append((3, f))
        return out
    for b in range(8):
        dp, qb = b // 2, b % 2
        half = b % 2
        ready = 8 * dp + 7 + 4
        for dd in range(2):
            db = 2 * dp + dd
            k, ob = Oloc(db, qb)
            if k == "a":
                for r in range(16):
                    st.append((1, "v_accvgpr_read_b32 v%d, a%d" % (AT + r, ob + r), ready))
                base = AT
            else:
                base = ob
            for z in range(8):
                def mul2(z=z, base=base, qb=qb):
                    if FLUSHING[0]:
                        A.e("v_pk_mul_f32 %s, %s, %s op_sel:[0,%d] op_sel_hi:[1,%d]" % (vr(base + 2 * z, 2), vr(base + 2 * z, 2), vr(V_INV, 2), qb, qb))
                    else:
                        A.e("v_mul_f32 v%d, v%d, v%d" % (base + 2 * z, base + 2 * z, V_INV + qb))
                        A.e("v_mul_f32 v%d, v%d, v%d" % (base + 2 * z + 1, base + 2 * z + 1, V_INV + qb))
                st.append((2, mul2, ready))
            for z in range(8):
                st.append((1, "v_cvt_pk_bf16_f32 v%d, v%d, v%d" % (base + z, base + 2 * z, base + 2 * z + 1), ready))
            if b == 0 and dd == 0:
                st.append((24, addr2, ready))
            for z in range(4):
                def w(z=z, base=base, dd=dd, b=b, half=half):
                    A.ds(("W", b), "ds_write_b64 v%d, %s offset:%d" % (WA + 4 * dd + z, vr(base + 2 * z, 2), half * 4096))
                st.append((1, w, gate if gate else ready))
            if dd == 0 and b >= 1:
                st.append(rdback(b - 1))
            if dd == 1 and b >= 1:
                st += store(b - 1)
    st.append(rdback(7))
    st += store(7)
    return Stream(st)

def shift_tags(q, d):
    return [(t[0], t[1] + d) if isinstance(t, tuple) and t[0] in ("K", "V") else t for t in q]

BASES_B = [(S_STG, 0), (S_STG, 4096), (S_LDSW, 0), (S_LDSW, 16384)]
ORD_N = pv_order(False)
ORD_D = pv_order(True)

def mkbar(need, full_lds=False):
    def f():
        if full_lds: A.wait_ds_all()
        A.wait_vm(need)
        A.e("s_barrier")
    return f

def phase2(u, j):
    T = 16 * u + j
    last_unit = (u == 1)
    pre, post = [], []
    need = []
    if j + 2 <= 15: need.append(("K", T + 2))
    if j + 1 <= 15: need.append(("V", T + 1))
    if j + 3 <= 15: post += dma_v(T + 3)
    if j + 5 <= 15: post += dma_k(T + 5)
    BAR = 10
    if not last_unit:
        if j == 10:
            post += dma_q("Q1", S_QN, 0, 0, ('stg', 0))
        if j == 11:
            post += dma_q("Q1", S_QN, 0, 1, ('stg', 4096)) + dma_q("Q1", S_QN, 0, 2, ('slot', 0))
        if j == 12:
            post += dma_q("Q1", S_QN, 0, 3, ('slot', 16384))
        if j == 13:
            post += dma_v(16) + dma_k(16)
        if j == 14:
            pre = [(1, lambda: A.wait_vm(["Q1"]))] + q_reads(0, BASES_B)
            post += [lambda: A.wait_ds(["Q"])]
            post += dma_q("Q2", S_QN, 1, 0, ('stg', 0)) + dma_q("Q2", S_QN, 1, 1, ('stg', 4096))
            post += dma_q("Q2", S_QN, 1, 2, ('slot', 0)) + dma_q("Q2", S_QN, 1, 3, ('slot', 16384))
    F = Filler()
    spre = Stream(pre)
    def bar():
        flush([spre])
        mkbar(need)()
    streams = [dmastream(post, BAR + 1), spre, Stream(softmaxA_stream((T + 1) % 2), 6)]
    pv_group(F, T, ORD_N, streams, bar=(BAR, bar), kpre=(T + 2 if j + 2 <= 15 else None), first=(j == 0))
    flush(streams)
    check_slow((T + 1) % 2)

def phase1(u, j):
    T = 16 * u + j
    F = Filler()
    streams = [Stream(softmaxB_stream(T % 2))]
    qk_group(F, T + 1, (T + 1) % 2, streams, vpre=(T, ORD_N))
    flush(streams)

def iteration(u, j):
    phase1(u, j)
    phase2(u, j)

def gen_loop(u):
    start = len(A.lines)
    site0 = site_cnt[0]
    for j in range(1, 5): iteration(u, j)
    text1 = A.lines[start:]
    vm1, lds1 = list(A.vm), list(A.lds)
    del A.lines[start:]
    A.vm = shift_tags(vm1, -4); A.lds = list(lds1); site_cnt[0] = site0
    for j in range(1, 5): iteration(u, j)
    text2 = A.lines[start:]
    assert A.vm == vm1 and A.lds == lds1, "loop not steady"
    assert len(text1) == len(text2)
    merged = []
    for a, b in zip(text1, text2):
        if a != b:
            assert a.strip().startswith("s_waitcnt") and b.strip().startswith("s_waitcnt"), (a, b)
            na = int(a[a.index("(") + 1:a.index(")")]); nb = int(b[b.index("(") + 1:b.index(")")])
            merged.append(a if na <= nb else b)
        else:
            merged.append(a)
    del A.lines[start:]
    A.e("s_mov_b32 s%d, 0" % S_CNT)
    A.label("L_loop_%d" % u)
    A.lines += merged
    A.e("s_add_u32 s%d, s%d, 1" % (S_CNT, S_CNT))
    A.e("s_cmp_lt_u32 s%d, 2" % S_CNT)
    A.e("s_cbranch_scc1 L_loop_%d" % u)
    A.vm = shift_tags(A.vm, 4)

def head_of_unit(u, F, estream, extra_dma):
    T0 = 16 * u
    g0 = F.g
    streams = []
    d1 = dmastream(extra_dma, g0)
    streams.append(d1)
    if estream: streams.append(estream)
    qk_group(F, T0, 0, streams, bar=(27, mkbar([("K", T0 + 1)], full_lds=True)), kpre=T0 + 1)
    g1 = F.g
    if os.environ.get("FINE") and u == 1:
        ls = list(A.lds); stamp(); A.lds = ls
    post = (dma_v(2) if u == 0 else []) + dma_k(T0 + 4)
    sm = Stream(init_stream(0) + softmaxB_stream(0), g1 + 3)
    d1.items += dmastream(post, g1).items
    streams = [d1, sm]
    if estream: streams.append(estream)
    qk_group(F, T0 + 1, 1, streams, vpre=(T0, ORD_N), bar=(22, mkbar([("V", T0)])))
    if os.environ.get("FINE") and u == 1:
        ls = list(A.lds); stamp(); A.lds = ls
        print("left after head groups:", [len(x.items) for x in streams])
    flush(streams)
    A.e("s_nop 1")

def tail_of_unit(u):
    T = 16 * u + 15
    last = (u == 1)
    for pos in range(4):
        ks, db = ORD_D[pos]
        vread(T, pos, ks, db, 0); vread(T, pos, ks, db, 1)
    sm = Stream(softmaxB_stream(1))
    extra = [] if last else (dma_v(17) + dma_k(17))
    k = 0
    while sm.items:
        c, it, _ = sm.items.pop(0); A.e(it); k += 1
        if extra and k % 6 == 0:
            extra.pop(0)()
    emit_seq(extra)
    A.e("s_nop 1")
    F = Filler()
    if last:
        E = epilogue_stream(S_QOFF, None)
        pv_group(F, T, ORD_D, [E])
        A.e("s_nop 15")
        flush([E])
        return
    QAT = 20
    qs = Stream([(1, lambda: A.wait_vm(["Q2"]))] + q_reads(1, BASES_B) + [(1, lambda: A.wait_ds(["Q"]))], QAT)
    E = epilogue_stream(S_QOFF, lambda: not qs.items)
    streams = [dmastream(dma_v(18), 11), qs, E]
    pv_group(F, T, ORD_D, streams, bar=(10, mkbar([("K", 16)])), kpre=16)
    flush([streams[0], qs])
    stamp()
    head_of_unit(1, F, E, dma_k(18) + dma_k(19))
    A.e("s_mov_b32 s%d, s%d" % (S_QOFF, S_QN))

def unit_body(u):
    stamp()
    phase2(u, 0)
    gen_loop(u)
    for j in range(9, 15):
        iteration(u, j)
    stamp()
    tail_of_unit(u)

hdr = open("standalone__gqa_softmax__near_ridge.s.ref").read().split("\n")
head = []
for l in hdr:
    if l.startswith("; @launch"):
        head.append("; @launch grid=(256,1,1) block=(256,1,1) lds=163840")
    elif l.startswith(";"):
        head.append(l)
    else:
        break

A.e("s_cmp_ge_u32 s2, 256")
A.e("s_cbranch_scc1 L_end")
A.e("s_load_dwordx4 s[4:7], s[0:1], 0")
A.e("s_load_dwordx4 s[36:39], s[0:1], 16")
if STAMPS:
    A.e("s_load_dwordx2 s[48:49], s[0:1], %d" % (32 if DBG else 40))
stamp()
A.e("s_and_b32 s42, s2, 7")
A.e("s_lshr_b32 s43, s2, 3")
A.e("s_and_b32 s44, s43, 1")
A.e("s_lshr_b32 s43, s43, 1")
A.e("s_lshl_b32 s42, s42, 4")
A.e("s_add_u32 s42, s42, s43")
A.e("s_lshl_b32 s45, s42, 1")
A.e("s_add_u32 s45, s45, s44")
A.e("v_lshrrev_b32 v33, 6, v0")
A.e("v_and_b32 v32, 63, v0")
A.e("s_nop 0")
A.e("v_readfirstlane_b32 s%d, v33" % S_WAVE)
A.e("s_mov_b32 s%d, %s" % (S_C, f32hex(C_SCALE)))
A.e("s_nop 2")
A.e("s_lshl_b32 s%d, s%d, 12" % (S_LDSW, S_WAVE))
A.e("s_lshl_b32 s%d, s%d, 13" % (S_STG, S_WAVE))
A.e("s_add_u32 s%d, s%d, 0x%x" % (S_STG, S_STG, STG))
A.e("s_lshl_b32 s%d, s42, 18" % S_KOFF)
A.e("s_add_u32 s%d, s%d, s%d" % (S_KOFF, S_KOFF, S_LDSW))
A.e("s_mov_b32 s%d, s%d" % (S_VOFF, S_KOFF))
A.e("s_lshl_b32 s%d, s45, 17" % S_QOFF)
A.e("s_lshl_b32 s43, s%d, 15" % S_WAVE)
A.e("s_add_u32 s%d, s%d, s43" % (S_QOFF, S_QOFF))
A.e("s_add_u32 s%d, s%d, 0x2000000" % (S_QN, S_QOFF))
A.e("s_and_b32 s46, s%d, 1" % S_WAVE)
A.e("s_lshl_b32 s46, s46, 7")
A.e("s_xor_b32 s47, s46, 0x80")
A.e("v_and_b32 v33, 31, v32")
A.e("v_lshrrev_b32 v34, 5, v32")
A.e("v_lshlrev_b32 v35, 9, v33")
A.e("v_and_b32 v36, 15, v33")
A.e("v_xor_b32 v36, v36, v34")
for f in range(8):
    A.e("v_xor_b32 v37, %d, v36" % (2 * f))
    A.e("v_lshl_add_u32 v%d, v37, 4, v35" % (V_ADK + f))
A.e("s_and_b32 s43, s%d, 1" % S_WAVE)
A.e("s_lshl_b32 s43, s43, 3")
A.e("v_lshlrev_b32 v35, 9, v34")
A.e("v_xor_b32 v36, v33, v34")
A.e("v_xor_b32 v36, s43, v36")
for k in range(4):
    A.e("v_xor_b32 v37, %d, v36" % (2 * k))
    A.e("v_lshl_add_u32 v%d, v37, 4, v35" % (V_OFFK + k))
A.e("v_lshlrev_b32 v36, 2, v34")
A.e("v_xor_b32 v36, v33, v36")
for k2 in range(2):
    A.e("v_xor_b32 v37, %d, v36" % (8 * k2))
    A.e("v_lshl_add_u32 v%d, v37, 4, v35" % (V_OFFV + k2))
A.e("v_bfe_u32 v35, v32, 2, 2")
A.e("v_lshl_add_u32 v36, v34, 2, v35")
A.e("v_lshlrev_b32 v36, 9, v36")
A.e("v_add_u32 v36, 0x10000, v36")
A.e("v_bfe_u32 v37, v32, 4, 1")
A.e("v_lshl_add_u32 v36, v37, 5, v36")
A.e("v_and_b32 v37, 3, v32")
A.e("v_lshl_add_u32 v36, v37, 3, v36")
for f in range(4):
    A.e("v_xor_b32 v37, %d, v35" % f)
    A.e("v_lshl_add_u32 v%d, v37, 6, v36" % (V_ADV + f))
A.e("s_waitcnt lgkmcnt(0)")
for (d, p) in ((8, 4), (12, 6), (16, 36), (20, 38)):
    A.e("s_mov_b32 s%d, s%d" % (d, p))
    A.e("s_and_b32 s%d, s%d, 0xffff" % (d + 1, p + 1))
    A.e("s_mov_b32 s%d, 0x4000000" % (d + 2))
    A.e("s_mov_b32 s%d, 0x20000" % (d + 3))
A.e("s_mov_b32 s35, s46")
A.e("s_mov_b32 s36, s47")
STAG = int(os.environ.get("STAG", "0"))
A.e("s_lshr_b32 s43, s2, 4")
A.e("s_and_b32 s43, s43, 1")
def gwait(n):
    A.e("s_cmp_eq_u32 s43, 0")
    A.e("s_cbranch_scc1 L_gw%d" % n)
    A.e("s_waitcnt vmcnt(0)")
    A.label("L_gw%d" % n)
emit_seq(dma_k(0))
if STAG >= 2: gwait(0)
emit_seq(dma_q("Q1", S_QOFF, 0, 0, ('stg', 0)) + dma_q("Q1", S_QOFF, 0, 1, ('stg', 4096)))
if STAG >= 3: gwait(1)
emit_seq(dma_q("Q1", S_QOFF, 0, 2, ('slot', 32768)) + dma_q("Q1", S_QOFF, 0, 3, ('slot', 49152)))
if STAG >= 1: gwait(2)
for p in range(4):
    emit_seq(dma_q("Q2", S_QOFF, 1, p, ('slot', 65536 + p * 16384)))
    if STAG >= 3 and p == 1: gwait(3)
emit_seq(dma_k(1))
A.wait_vm(["Q1"])
for c, f in q_reads(0, [(S_STG, 0), (S_STG, 4096), (S_LDSW, 32768), (S_LDSW, 49152)]): f()
A.wait_vm(["Q2"])
for c, f in q_reads(1, [(S_LDSW, 65536 + p * 16384) for p in range(4)]): f()
A.wait_ds(["Q"])
A.e("s_barrier")
stamp()
for s in range(4):
    kread(0, s)
F0 = Filler()
head_of_unit(0, F0, None, dma_v(0) + dma_k(2) + dma_v(1) + dma_k(3))
unit_body(0)
unit_body(1)
if STAMPS:
    stamp()
    A.e("s_waitcnt vmcnt(0)")
    stamp()
    n = nstamp[0]
    A.e("s_mov_b32 s8, s48")
    A.e("s_and_b32 s9, s49, 0xffff")
    if DBG:
        A.e("s_mov_b32 s10, 256")
        A.e("s_mov_b32 s11, 0x20000")
        A.e("s_cmp_lg_u32 s2, 77")
        A.e("s_cbranch_scc1 L_end")
        A.e("s_cmp_lg_u32 s%d, 0" % S_WAVE)
        A.e("s_cbranch_scc1 L_end")
        A.e("v_mov_b32 v1, 0")
        for i in range(1, n // 2):
            A.e("s_sub_u32 s32, s%d, s50" % (50 + 4 * i))
            A.e("v_mov_b32 v2, s32")
            A.e("buffer_store_dword v2, v1, s[8:11], 0 offen offset:%d" % (4 * (i - 1)))
            A.e("s_nop 1")
        A.e("s_sub_u32 s32, s%d, s52" % (52 + 4 * (n // 2 - 1)))
        A.e("v_mov_b32 v2, s32")
        A.e("buffer_store_dword v2, v1, s[8:11], 0 offen offset:%d" % (4 * (n // 2 - 1)))
    else:
        A.e("s_mov_b32 s10, 0x1000000")
        A.e("s_mov_b32 s11, 0x20000")
        A.e("s_lshl_b32 s32, s2, 2")
        A.e("s_add_u32 s32, s32, s%d" % S_WAVE)
        A.e("s_mul_i32 s32, s32, %d" % (n * 8))
        A.e("v_mov_b32 v1, 0")
        for i in range(n):
            A.e("v_mov_b32 v2, s%d" % (50 + 2 * i))
            A.e("v_mov_b32 v3, s%d" % (51 + 2 * i))
            A.e("buffer_store_dwordx2 v[2:3], v1, s[8:11], s32 offen offset:%d" % (8 * i))
            A.e("s_nop 1")
    print("nstamps", n)
A.label("L_end")
A.e("s_endpgm")
slow_block(0)
slow_block(1)

body = "\n".join(A.lines)
text = "\n".join(head) + """
.amdgcn_target "amdgcn-amd-amdhsa--gfx950"
.text
.globl %s
.p2align 8
.type %s,@function
%s:
%s
.section .rodata,"a"
.p2align 6
.amdhsa_kernel %s
  .amdhsa_next_free_vgpr 512
  .amdhsa_next_free_sgpr 102
  .amdhsa_accum_offset 256
  .amdhsa_group_segment_fixed_size 0
  .amdhsa_kernarg_size 48
  .amdhsa_user_sgpr_count 2
  .amdhsa_user_sgpr_kernarg_segment_ptr 1
  .amdhsa_system_sgpr_workgroup_id_x 1
.end_amdhsa_kernel
""" % (NAME, NAME, NAME, body, NAME)
open(OUT, "w").write(text)
print("wrote", OUT, len(A.lines), "lines", len(text), "bytes")
```

```python
import sys, struct, os

OUT = sys.argv[1] if len(sys.argv) > 1 else "standalone__gqa_softmax__near_ridge.s"
STAMPS = len(sys.argv) > 2 and sys.argv[2] in ("stamps", "dbg")
DBG = len(sys.argv) > 2 and sys.argv[2] == "dbg"
NAME = "standalone__gqa_softmax__near_ridge_kernel"
NT = os.environ.get("NT", "nt")
NTO = os.environ.get("NTO", "")
BUDGET = float(os.environ.get("BUDGET", "5.0"))

def f32hex(x):
    return "0x%08x" % struct.unpack("<I", struct.pack("<f", x))[0]

C_SCALE = 0.0625 * 1.4426950408889634

V_OFFK = 0
V_OFFV = 4
V_ADK = 6
V_ADV = 14
V_MC = 18
V_L = 20
V_MX = 22
V_RA = 23
V_INV = 24
V_OST = 26
V_T = 27
V_S = 32
A_Q = 0
A_KF = 128
A_VF = 144

S_KOFF, S_VOFF, S_LDSW, S_CNT, S_C, S_QOFF, S_WAVE, S_QN, S_T0, S_T1, S_STG, S_T2 = 24, 25, 26, 27, 28, 29, 30, 31, 32, 33, 34, 37
S_RET = 40
S_KW, S_VW, S_KR, S_VR, S_D, S_U, S_QL0, S_QL1, S_XX, S_SO, S_LDSV = 50, 51, 52, 53, 54, 55, 60, 61, 62, 63, 49
S_SRD = 56
STG = 131072

def Sreg(buf, qb, r=0): return V_S + 32 * buf + 16 * qb + r
def vr(a, n): return "v[%d:%d]" % (a, a + n - 1)
def ar(a, n): return "a[%d:%d]" % (a, a + n - 1)
def Qop(qb, s): return ar(A_Q + 64 * qb + 4 * s, 4)
def Oloc(db, qb):
    n = db * 2 + qb
    return ("v", 96 + 16 * n) if n < 10 else ("a", 160 + 16 * (n - 10))
def Oop(db, qb):
    k, b = Oloc(db, qb)
    return "%s[%d:%d]" % (k, b, b + 15)

class Asm:
    def __init__(self):
        self.lines = []
        self.lds = []
        self.vm = []
    def e(self, s):
        self.lines.append("    " + s)
    def label(self, s):
        self.lines.append(s + ":")
    def ds(self, tag, s):
        self.e(s); self.lds.append(tag)
    def vmem(self, tag, s):
        self.e(s); self.vm.append(tag)
    def wait_ds(self, tags, force=False):
        if not isinstance(tags, list): tags = [tags]
        idx = [i for i, t in enumerate(self.lds) if t in tags]
        if not idx:
            if not force: return
            n = min(len(self.lds), 15)
        else:
            n = len(self.lds) - 1 - idx[-1]
        n = min(n, 15)
        self.e("s_waitcnt lgkmcnt(%d)" % n)
        self.lds = self.lds[len(self.lds) - n:] if n else []
    def wait_ds_all(self):
        self.e("s_waitcnt lgkmcnt(0)"); self.lds = []
    def wait_vm(self, tags, force=True):
        idx = [i for i, t in enumerate(self.vm) if t in tags]
        if not idx:
            if not force: return
            n = len(self.vm)
        else:
            n = len(self.vm) - 1 - idx[-1]
        n = min(n, 63)
        self.e("s_waitcnt vmcnt(%d)" % n)
        self.vm = self.vm[len(self.vm) - n:] if n else []

A = Asm()
nstamp = [0]
def stamp():
    if not STAMPS: return
    i = nstamp[0]; nstamp[0] += 2
    A.e("s_memrealtime s[%d:%d]" % (64 + 2 * i, 65 + 2 * i))
    A.e("s_memtime s[%d:%d]" % (66 + 2 * i, 67 + 2 * i))
    A.e("s_waitcnt lgkmcnt(0)")
    A.lds = []

site_cnt = [0]

def kslot(T):
    u, t = T // 16, T % 16
    return (t + 2 * u) % 4
def vslot(T):
    return T % 4

def kread(T, s):
    if os.environ.get("NOLDS") and T > 1: return
    e_, f = s // 8, s % 8
    A.ds(("K", s), "ds_read_b128 %s, v%d offset:%d" % (ar(A_KF + 4 * (s % 4), 4), V_ADK + f, e_ * 256))

def vread(T, pos, ks, db, t):
    if os.environ.get("NOLDS") and T > 0: return
    e_, f = db // 4, db % 4
    A.ds(("V", pos), "ds_read_b64_tr_b16 %s, v%d offset:%d" % (
        ar(A_VF + 4 * (pos % 4) + 2 * t, 2), V_ADV + f, ks * 8192 + t * 4096 + e_ * 256))

def pv_order(dbmajor):
    if dbmajor:
        return [(ks, db) for db in range(8) for ks in range(2)]
    return [(ks, db) for ks in range(2) for db in range(8)]

def dma_k(T):
    out = []
    if T == 16:
        out.append(lambda: A.e("s_add_u32 s%d, s%d, 0x%x" % (S_KOFF, S_KOFF, 127 * 262144)))
    out.append(lambda: A.e("s_add_u32 m0, s%d, s%d" % (S_LDSW, S_KW)))
    for k in range(4):
        def f(k=k):
            A.vmem(("K", T), "buffer_load_dwordx4 v%d, s[12:15], s%d offen offset:%d %s lds" % (V_OFFK + k, S_KOFF, k * 1024, NT))
        out.append(f)
    def fin():
        A.e("s_add_u32 s%d, s%d, 0x4000" % (S_KOFF, S_KOFF))
        A.e("s_add_u32 s%d, s%d, 0x4000" % (S_KW, S_KW))
        A.e("s_and_b32 s%d, s%d, 0xffff" % (S_KW, S_KW))
    out.append(fin)
    return out

def dma_ktype(T, piece):
    out = []
    def pre():
        A.e("s_add_u32 s%d, s%d, 0x%x" % (S_T2, S_QN, piece * 4096))
        A.e("s_cmp_eq_u32 s%d, 5" % S_CNT)
        A.e("s_cselect_b32 s%d, s8, s12" % S_SRD)
        A.e("s_cselect_b32 s%d, s9, s13" % (S_SRD + 1))
        A.e("s_cselect_b32 s%d, s%d, 0" % (S_XX, 35 + (piece % 2)))
        A.e("s_cselect_b32 s%d, s%d, s%d" % (S_SO, S_T2, S_KOFF))
        A.e("s_cselect_b32 s%d, 0, 0x4000" % S_T2)
        A.e("s_add_u32 m0, s%d, s%d" % (S_LDSW, S_KW))
    out.append(pre)
    for k in range(4):
        def f(k=k):
            A.e("v_xor_b32 v%d, s%d, v%d" % (V_T + 4, S_XX, V_OFFK + k))
            A.vmem(("K", T), "buffer_load_dwordx4 v%d, s[%d:%d], s%d offen offset:%d %s lds" % (V_T + 4, S_SRD, S_SRD + 3, S_SO, k * 1024, NT))
        out.append(f)
    def fin():
        A.e("s_add_u32 s%d, s%d, s%d" % (S_KOFF, S_KOFF, S_T2))
        A.e("s_add_u32 s%d, s%d, 0x4000" % (S_KW, S_KW))
        A.e("s_and_b32 s%d, s%d, 0xffff" % (S_KW, S_KW))
    out.append(fin)
    return out

def dma_v(T):
    out = []
    if T == 16:
        out.append(lambda: A.e("s_add_u32 s%d, s%d, 0x%x" % (S_VOFF, S_VOFF, 127 * 262144)))
    out.append(lambda: A.e("s_add_u32 m0, s%d, s%d" % (S_LDSV, S_VW)))
    for k in range(4):
        def f(k=k):
            A.vmem(("V", T), "buffer_load_dwordx4 v%d, s[16:19], s%d offen offset:%d %s lds" % (V_OFFV + (k % 2), S_VOFF, k * 1024, NT))
        out.append(f)
    def fin():
        A.e("s_add_u32 s%d, s%d, 0x4000" % (S_VOFF, S_VOFF))
        A.e("s_add_u32 s%d, s%d, 0x4000" % (S_VW, S_VW))
        A.e("s_and_b32 s%d, s%d, 0xffff" % (S_VW, S_VW))
    out.append(fin)
    return out

def adv_k(n=1):
    def sal():
        A.e("s_add_u32 s%d, s%d, 0x%x" % (S_T1, S_KR, n * 0x4000))
        A.e("s_and_b32 s%d, s%d, 0xffff" % (S_T1, S_T1))
        A.e("s_sub_u32 s%d, s%d, s%d" % (S_D, S_T1, S_KR))
        A.e("s_mov_b32 s%d, s%d" % (S_KR, S_T1))
    return [(4, sal)] + [(1, "v_add_u32 v%d, s%d, v%d" % (V_ADK + f, S_D, V_ADK + f)) for f in range(8)]

def adv_v():
    def sal():
        A.e("s_add_u32 s%d, s%d, 0x4000" % (S_T1, S_VR))
        A.e("s_and_b32 s%d, s%d, 0xffff" % (S_T1, S_T1))
        A.e("s_sub_u32 s%d, s%d, s%d" % (S_D, S_T1, S_VR))
        A.e("s_mov_b32 s%d, s%d" % (S_VR, S_T1))
    return [(4, sal)] + [(1, "v_add_u32 v%d, s%d, v%d" % (V_ADV + f, S_D, V_ADV + f)) for f in range(4)]

def dma_q(tag, sq, qb, p, dest):
    out = []
    def pre():
        A.e("s_add_u32 s%d, s%d, 0x%x" % (S_T2, sq, qb * 16384 + p * 4096))
        if dest[0] == 'stg':
            A.e("s_add_u32 m0, s%d, 0x%x" % (S_STG, dest[1]))
        elif dest[0] == 'sg':
            A.e("s_mov_b32 m0, s%d" % dest[1])
        else:
            A.e("s_add_u32 m0, s%d, 0x%x" % (S_LDSW, dest[1]))
    out.append(pre)
    for k in range(4):
        def f(k=k):
            A.e("v_xor_b32 v%d, s%d, v%d" % (V_T + 4, 35 + (p % 2), V_OFFK + k))
            A.vmem(tag, "buffer_load_dwordx4 v%d, s[8:11], s%d offen offset:%d %s lds" % (V_T + 4, S_T2, k * 1024, NT))
        out.append(f)
    return out

def emit_seq(seq):
    for f in seq:
        f()
        A.e("s_nop 0")

def lane_id(dst):
    A.e("v_mbcnt_lo_u32_b32 v%d, -1, 0" % dst)
    A.e("v_mbcnt_hi_u32_b32 v%d, -1, v%d" % (dst, dst))

def q_delta(bases):
    d = V_T + 3
    t = V_T + 2
    lane_id(t)
    A.e("v_bfe_u32 v%d, v%d, 3, 2" % (t, t))
    for p in range(4):
        sg, c = bases[p]
        A.e("s_add_u32 s%d, s%d, 0x%x" % (S_T0, sg, (c - p * 4096) & 0xffffffff))
        A.e("s_sub_u32 s%d, s%d, s%d" % (S_T0, S_T0, S_KR))
        if p == 0:
            A.e("v_mov_b32 v%d, s%d" % (d, S_T0))
        else:
            A.e("v_cmp_eq_u32 vcc, %d, v%d" % (p, t))
            A.e("v_mov_b32 v%d, s%d" % (V_T + 1, S_T0))
            A.e("s_nop 0")
            A.e("v_cndmask_b32 v%d, v%d, v%d, vcc" % (d, d, V_T + 1))

def q_reads(qb, bases):
    out = [(16, lambda: q_delta(bases))]
    for s in range(16):
        def f(s=s):
            e_, ff = s // 8, s % 8
            A.e("v_add_u32 v%d, v%d, v%d" % (V_T + 2, V_ADK + ff, V_T + 3))
            A.ds("Q", "ds_read_b128 %s, v%d offset:%d" % (Qop(qb, s), V_T + 2, e_ * 256))
        out.append((2, f))
    return out

def softmaxB_stream(buf):
    st = []
    if os.environ.get("NOSM"): return st
    for ks in range(2):
        for qb in range(2):
            for i in range(4):
                r0 = Sreg(buf, qb, 8 * ks + 2 * i)
                dst = Sreg(buf, qb, 8 * ks + i)
                st.append((2, "v_exp_f32 v%d, v%d" % (r0, r0)))
                st.append((2, "v_exp_f32 v%d, v%d" % (r0 + 1, r0 + 1)))
                st.append((1, "v_add_f32 v%d, v%d, v%d" % (V_L + qb, V_L + qb, r0)))
                st.append((1, "v_add_f32 v%d, v%d, v%d" % (V_L + qb, V_L + qb, r0 + 1)))
                st.append((1, "v_cvt_pk_bf16_f32 v%d, v%d, v%d" % (dst, r0, r0 + 1)))
    return st

def softmaxA_stream(buf):
    if os.environ.get("NOSM"): return [(1, "v_mov_b32 v%d, 0" % V_MX)]
    ops = []
    xs = []
    for qb in range(2):
        for r in range(16):
            x = Sreg(buf, qb, r)
            ops.append("v_fma_f32 v%d, v%d, s%d, -v%d" % (x, x, S_C, V_MC + qb))
            xs.append(x)
    mx = [(2, "v_max3_f32 v%d, v%d, v%d, v%d" % (V_MX, xs[0], xs[1], xs[2]))]
    i = 3
    while i < 32:
        a = xs[i]; b = xs[i + 1] if i + 1 < 32 else xs[i]
        mx.append((min(i + 1, 31), "v_max3_f32 v%d, v%d, v%d, v%d" % (V_MX, V_MX, a, b)))
        i += 2
    res = []
    mi = 0
    for k, o in enumerate(ops):
        res.append((1, o))
        while mi < len(mx) and mx[mi][0] <= k - 1:
            res.append((1, mx[mi][1])); mi += 1
    while mi < len(mx):
        res.append((1, mx[mi][1])); mi += 1
    return res

def init_stream(buf):
    st = []
    t, t2 = V_MX, V_T + 1
    for qb in range(2):
        xs = [Sreg(buf, qb, r) for r in range(16)]
        for x in xs:
            st.append((1, "v_mul_f32 v%d, s%d, v%d" % (x, S_C, x)))
        st.append((1, "v_max3_f32 v%d, v%d, v%d, v%d" % (t, xs[0], xs[1], xs[2])))
        for i in range(3, 15, 2):
            st.append((1, "v_max3_f32 v%d, v%d, v%d, v%d" % (t, t, xs[i], xs[i + 1])))
        def fin(qb=qb, xs=xs):
            A.e("v_max_f32 v%d, v%d, v%d" % (t, t, xs[15]))
            A.e("v_mov_b32 v%d, v%d" % (t2, t))
            A.e("s_nop 1")
            A.e("v_permlane32_swap_b32 v%d, v%d" % (t, t2))
            A.e("s_nop 1")
            A.e("v_max_f32 v%d, v%d, v%d" % (V_MC + qb, t, t2))
            A.e("v_mov_b32 v%d, 0" % (V_L + qb))
        st.append((9, fin))
        for x in xs:
            st.append((1, "v_sub_f32 v%d, v%d, v%d" % (x, x, V_MC + qb)))
    return st

class Stream:
    def __init__(self, items, earliest=0, maxper=99):
        self.items = [(it[0], it[1], (it[2] if len(it) > 2 else earliest)) for it in items]
        self.maxper = maxper
    def __bool__(self): return bool(self.items)

class Filler:
    def __init__(self):
        self.credit = 0.0
        self.g = 0
    def gap(self, used_fixed, streams):
        self.credit += BUDGET - used_fixed
        cnt = {}
        progress = True
        while progress:
            progress = False
            for st in streams:
                if st.items and (st.items[0][2]() if callable(st.items[0][2]) else st.items[0][2] <= self.g) and cnt.get(id(st), 0) < st.maxper and \
                   (st.items[0][0] <= self.credit + 1e-9 or (st.items[0][0] > BUDGET and self.credit > 0)):
                    c, it, _ = st.items.pop(0)
                    if callable(it): it()
                    else: A.e(it)
                    self.credit -= c
                    cnt[id(st)] = cnt.get(id(st), 0) + 1
                    progress = True
                    break
        if self.credit > BUDGET: self.credit = BUDGET
        self.g += 1

FLUSHING = [False]
def flush(streams, nop_between=False):
    FLUSHING[0] = True
    _flush(streams)
    FLUSHING[0] = False
def _flush(streams):
    for st in streams:
        while st.items:
            c, it, _ = st.items.pop(0)
            if st.maxper == 1: A.e("s_nop 0")
            if callable(it): it()
            else: A.e(it)

def dmastream(seq, earliest=0):
    return Stream([(1, f) for f in seq], earliest, maxper=1)

def qk_group(F, Tk, buf, streams, vpre=None, bar=None, kpre=None, hook=None):
    for m in range(32):
        s, qb = m // 2, m % 2
        if qb == 0:
            A.wait_ds(("K", s), force=True)
        c = "0" if s == 0 else vr(Sreg(buf, qb), 16)
        A.e("v_mfma_f32_32x32x16_bf16 %s, %s, %s, %s" % (vr(Sreg(buf, qb), 16), ar(A_KF + 4 * (s % 4), 4), Qop(qb, s), c))
        used = 0
        if qb == 1:
            used += 1
            if s + 4 < 16:
                kread(Tk, s + 4); used += 1
        if hook: hook(m)
        if vpre and m >= 24:
            pos = (m - 24) // 2
            ks, db = vpre[1][pos]
            vread(vpre[0], pos, ks, db, (m - 24) % 2); used += 1
        if bar and m == bar[0]:
            bar[1](); used += 2
        if kpre is not None:
            for s2 in {28: [0, 1], 30: [2], 31: [3]}.get(m, []):
                kread(kpre, s2); used += 1
        F.gap(used, streams)

def pv_group(F, T, order, streams, bar=None, kpre=None, first=False, hook=None):
    cb = T % 2
    for m in range(32):
        pos, qb = m // 2, m % 2
        ks, db = order[pos]
        if qb == 0:
            A.wait_ds(("V", pos), force=True)
        c = "0" if (first and ks == 0) else Oop(db, qb)
        A.e("v_mfma_f32_32x32x16_bf16 %s, %s, %s, %s" % (Oop(db, qb), ar(A_VF + 4 * (pos % 4), 4), vr(Sreg(cb, qb, 8 * ks), 4), c))
        used = 0
        if qb == 1:
            used += 1
            if pos + 4 < 16:
                k2, d2 = order[pos + 4]
                vread(T, pos + 4, k2, d2, 0); vread(T, pos + 4, k2, d2, 1); used += 2
        if hook: hook(m)
        if bar and m == bar[0]:
            bar[1](); used += 2
        if kpre is not None and m >= 28:
            kread(kpre, m - 28); used += 1
        F.gap(used, streams)

def check_slow(nb):
    site = site_cnt[0]; site_cnt[0] += 1
    A.e("v_cmp_lt_f32 vcc, 0x41000000, v%d" % V_MX)
    A.e("s_cbranch_vccz L_back_%d" % site)
    A.e("s_call_b64 s[%d:%d], L_slow_%d" % (S_RET, S_RET + 1, nb))
    A.label("L_back_%d" % site)

def slow_block(buf):
    A.label("L_slow_%d" % buf)
    A.e("s_nop 15")
    t, t2, al = V_T, V_T + 1, V_T + 2
    for qb in range(2):
        xs = [Sreg(buf, qb, r) for r in range(16)]
        A.e("v_max3_f32 v%d, v%d, v%d, v%d" % (t, xs[0], xs[1], xs[2]))
        for i in range(3, 15, 2):
            A.e("v_max3_f32 v%d, v%d, v%d, v%d" % (t, t, xs[i], xs[i + 1]))
        A.e("v_max_f32 v%d, v%d, v%d" % (t, t, xs[15]))
        A.e("v_mov_b32 v%d, v%d" % (t2, t))
        A.e("s_nop 1")
        A.e("v_permlane32_swap_b32 v%d, v%d" % (t, t2))
        A.e("s_nop 1")
        A.e("v_max3_f32 v%d, v%d, v%d, 0" % (t, t, t2))
        A.e("v_exp_f32 v%d, -v%d" % (al, t))
        A.e("v_add_f32 v%d, v%d, v%d" % (V_MC + qb, V_MC + qb, t))
        for x in xs:
            A.e("v_sub_f32 v%d, v%d, v%d" % (x, x, t))
        A.e("v_mul_f32 v%d, v%d, v%d" % (V_L + qb, V_L + qb, al))
        for db in range(8):
            k, b = Oloc(db, qb)
            for r in range(16):
                if k == "v":
                    A.e("v_mul_f32 v%d, v%d, v%d" % (b + r, b + r, al))
                else:
                    tt = V_T + (r % 2)
                    A.e("v_accvgpr_read_b32 v%d, a%d" % (tt, b + r))
                    A.e("v_mul_f32 v%d, v%d, v%d" % (tt, tt, al))
                    A.e("v_accvgpr_write_b32 a%d, v%d" % (b + r, tt))
    A.e("s_nop 1")
    A.e("s_setpc_b64 s[%d:%d]" % (S_RET, S_RET + 1))

def epilogue_stream(sq, gate):
    st = []
    WA = Oloc(0, 0)[1] + 8
    RD = [Oloc(1, 0)[1], Oloc(1, 1)[1]]
    AT = Oloc(0, 1)[1]
    def inv():
        for qb in range(2):
            A.e("v_mov_b32 v%d, v%d" % (V_T, V_L + qb))
            A.e("s_nop 1")
            A.e("v_permlane32_swap_b32 v%d, v%d" % (V_L + qb, V_T))
            A.e("s_nop 1")
            A.e("v_add_f32 v%d, v%d, v%d" % (V_T, V_T, V_L + qb))
            A.e("v_rcp_f32 v%d, v%d" % (V_INV + qb, V_T))
    st.append((14, inv, 0))
    def addr1():
        lane_id(V_T + 1)
        A.e("v_lshrrev_b32 v%d, 3, v%d" % (V_T, V_T + 1))
        A.e("v_and_b32 v%d, 7, v%d" % (V_T + 1, V_T + 1))
        A.e("v_lshlrev_b32 v%d, 9, v%d" % (V_RA, V_T))
        A.e("v_lshl_add_u32 v%d, v%d, 4, v%d" % (V_OST, V_T + 1, V_RA))
        A.e("v_xor_b32 v%d, v%d, v%d" % (V_T + 1, V_T + 1, V_T))
        A.e("v_lshlrev_b32 v%d, 7, v%d" % (V_T, V_T))
        A.e("v_lshl_add_u32 v%d, v%d, 4, v%d" % (V_T, V_T + 1, V_T))
        A.e("v_add_u32 v%d, s%d, v%d" % (V_RA, S_STG, V_T))
    st.append((10, addr1, 0))
    def addr2():
        lane_id(WA + 7)
        A.e("v_and_b32 v%d, 31, v%d" % (V_T, WA + 7))
        A.e("v_lshrrev_b32 v%d, 5, v%d" % (V_T + 1, WA + 7))
        A.e("v_lshlrev_b32 v%d, 7, v%d" % (WA + 7, V_T))
        A.e("v_lshl_add_u32 v%d, v%d, 3, v%d" % (WA + 7, V_T + 1, WA + 7))
        A.e("v_add_u32 v%d, s%d, v%d" % (WA + 7, S_STG, WA + 7))
        A.e("v_and_b32 v%d, 7, v%d" % (V_T, V_T))
        for c in range(8):
            A.e("v_xor_b32 v%d, %d, v%d" % (V_T + 1, c, V_T))
            A.e("v_lshl_add_u32 v%d, v%d, 4, v%d" % (WA + c, V_T + 1, WA + 7))
    def rdback(b):
        half = b % 2
        def f():
            A.wait_ds([("W", b)])
            for k in range(4):
                A.ds(("R", b), "ds_read_b128 %s, v%d offset:%d" % (vr(RD[half] + 4 * k, 4), V_RA, half * 4096 + k * 1024))
        return (5, f)
    def store(b):
        dp, qb = b // 2, b % 2
        half = b % 2
        out = []
        for k in range(4):
            def f(k=k):
                A.e("s_add_u32 s%d, s%d, 0x%x" % (S_T0, sq, qb * 16384 + dp * 128 + k * 4096))
                if k == 0: A.wait_ds([("R", b)])
                A.vmem("O", "buffer_store_dwordx4 %s, v%d, s[20:23], s%d offen offset:0 %s" % (vr(RD[half] + 4 * k, 4), V_OST, S_T0, NTO))
            out.append((3, f))
        return out
    for b in range(8):
        dp, qb = b // 2, b % 2
        half = b % 2
        ready = 8 * dp + 7 + 4
        for dd in range(2):
            db = 2 * dp + dd
            k, ob = Oloc(db, qb)
            if k == "a":
                for r in range(16):
                    st.append((1, "v_accvgpr_read_b32 v%d, a%d" % (AT + r, ob + r), ready))
                base = AT
            else:
                base = ob
            for z in range(8):
                def mul2(z=z, base=base, qb=qb):
                    if FLUSHING[0]:
                        A.e("v_pk_mul_f32 %s, %s, %s op_sel:[0,%d] op_sel_hi:[1,%d]" % (vr(base + 2 * z, 2), vr(base + 2 * z, 2), vr(V_INV, 2), qb, qb))
                    else:
                        A.e("v_mul_f32 v%d, v%d, v%d" % (base + 2 * z, base + 2 * z, V_INV + qb))
                        A.e("v_mul_f32 v%d, v%d, v%d" % (base + 2 * z + 1, base + 2 * z + 1, V_INV + qb))
                st.append((2, mul2, ready))
            for z in range(8):
                st.append((1, "v_cvt_pk_bf16_f32 v%d, v%d, v%d" % (base + z, base + 2 * z, base + 2 * z + 1), ready))
            if b == 0 and dd == 0:
                st.append((24, addr2, ready))
            for z in range(4):
                def w(z=z, base=base, dd=dd, b=b, half=half):
                    A.ds(("W", b), "ds_write_b64 v%d, %s offset:%d" % (WA + 4 * dd + z, vr(base + 2 * z, 2), half * 4096))
                st.append((1, w, gate if gate else ready))
            if dd == 0 and b >= 1:
                st.append(rdback(b - 1))
            if dd == 1 and b >= 1:
                st += store(b - 1)
    st.append(rdback(7))
    st += store(7)
    return Stream(st)

def shift_tags(q, d):
    return [(t[0], t[1] + d) if isinstance(t, tuple) and t[0] in ("K", "V") else t for t in q]

BASES_B = [(S_STG, 0), (S_STG, 4096), (S_QL0, 0), (S_QL1, 0)]
ORD_N = pv_order(False)
ORD_D = pv_order(True)

def mkbar(need, full_lds=False):
    def f():
        if full_lds: A.wait_ds_all()
        A.wait_vm(need)
        A.e("s_barrier")
    return f

def phase2(j, inloop=False):
    T = j
    pre, post = [], []
    early = []
    need = []
    if j + 2 <= 15: need.append(("K", T + 2))
    need.append(("V", T + 1))
    BAR = 10
    if inloop:
        post += dma_v(T + 3) + dma_ktype(T + 5, 2 + (j + 1) % 2)
    elif j == 0:
        post += dma_v(3) + dma_k(5)
    elif j == 13:
        def ql():
            A.e("s_sub_u32 s%d, s%d, 0x8000" % (S_QL0, S_KW))
            A.e("s_and_b32 s%d, s%d, 0xffff" % (S_QL0, S_QL0))
            A.e("s_add_u32 s%d, s%d, s%d" % (S_QL0, S_QL0, S_LDSW))
            A.e("s_sub_u32 s%d, s%d, 0x4000" % (S_QL1, S_KW))
            A.e("s_and_b32 s%d, s%d, 0xffff" % (S_QL1, S_QL1))
            A.e("s_add_u32 s%d, s%d, s%d" % (S_QL1, S_QL1, S_LDSW))
        early = [ql] + dma_q("Q1", S_QN, 0, 0, ('stg', 0)) + dma_q("Q1", S_QN, 0, 1, ('stg', 4096))
        post += dma_v(16) + dma_k(16)
    elif j == 14:
        pre = [(1, lambda: A.wait_vm(["Q1"]))] + q_reads(0, BASES_B)
        post += [lambda: A.wait_ds(["Q"])]
        post += dma_q("Q2", S_QN, 1, 0, ('stg', 0)) + dma_q("Q2", S_QN, 1, 1, ('stg', 4096))
        post += dma_q("Q2", S_QN, 1, 2, ('sg', S_QL0)) + dma_q("Q2", S_QN, 1, 3, ('sg', S_QL1))
    F = Filler()
    spre = Stream(pre)
    dst = dmastream(early, 0)
    dst.items += dmastream(post, BAR + 1).items
    sadv = Stream(adv_k(1) if j <= 13 else [], 0 if j != 14 else 0)
    def bar():
        flush([spre])
        if inloop:
            A.e("s_waitcnt vmcnt(12)"); A.vm = A.vm[-12:]
            A.e("s_barrier")
        elif j == 0:
            A.e("s_waitcnt vmcnt(8)"); A.vm = A.vm[-8:]
            A.e("s_barrier")
        else:
            mkbar(need)()
    streams = [dst, sadv, spre, Stream(softmaxA_stream((T + 1) % 2), 6)]
    def chk(m):
        if m == 27: flush([sadv])
    pv_group(F, T, ORD_N, streams, bar=(BAR, bar), kpre=(T + 2 if j + 2 <= 15 else None), first=(j == 0), hook=chk)
    flush(streams)
    check_slow((T + 1) % 2)

def phase1(j):
    T = j
    F = Filler()
    sadv = Stream(adv_v())
    streams = [sadv, Stream(softmaxB_stream(T % 2))]
    def chk(m):
        if m == 23: flush([sadv])
    qk_group(F, T + 1, (T + 1) % 2, streams, vpre=(T, ORD_N), hook=chk)
    flush(streams)

def gen_loop():
    lds0 = list(A.lds)
    A.e("s_mov_b32 s%d, 0" % S_CNT)
    A.label("L_loop")
    for j in (1, 2):
        phase1(j); phase2(j, inloop=True)
    assert A.lds == lds0, (A.lds, lds0)
    A.e("s_add_u32 s%d, s%d, 1" % (S_CNT, S_CNT))
    A.e("s_cmp_lt_u32 s%d, 6" % S_CNT)
    A.e("s_cbranch_scc1 L_loop")
    A.vm = [("V", 14)] * 4 + ["Q1"] * 4 + [("V", 15)] * 4 + ["Q1"] * 4

def head_of_unit(u, F, estream, extra_dma):
    T0 = 16 * u
    g0 = F.g
    streams = []
    d1 = dmastream(extra_dma, g0)
    streams.append(d1)
    if estream: streams.append(estream)
    def chk(m):
        if m == 24:
            flush([Stream(adv_k(1))])
    qk_group(F, T0, 0, streams, bar=(27, mkbar([("K", T0 + 1)], full_lds=True)), kpre=T0 + 1, hook=chk)
    g1 = F.g
    post = (dma_v(2) if u == 0 else []) + dma_k(T0 + 4)
    sm = Stream(init_stream(0) + softmaxB_stream(0), g1 + 3)
    d1.items += dmastream(post, g1).items
    streams = [d1, sm]
    if estream: streams.append(estream)
    qk_group(F, T0 + 1, 1, streams, vpre=(T0, ORD_N), bar=(22, mkbar([("V", T0)])))
    flush(streams)
    A.e("s_nop 1")

def tail_of_unit(last):
    T = 15
    flush([Stream(adv_v())])
    for pos in range(4):
        ks, db = ORD_D[pos]
        vread(T, pos, ks, db, 0); vread(T, pos, ks, db, 1)
    sm = Stream(softmaxB_stream(1))
    extra = [] if last else (dma_v(17) + dma_k(17))
    k = 0
    while sm.items:
        c, it, _ = sm.items.pop(0); A.e(it); k += 1
        if extra and k % 6 == 0:
            extra.pop(0)()
    emit_seq(extra)
    A.e("s_nop 1")
    F = Filler()
    if last:
        A.wait_vm(["Q2"])
        E = epilogue_stream(S_QOFF, None)
        pv_group(F, T, ORD_D, [E])
        A.e("s_nop 15")
        flush([E])
        return
    QAT = 20
    sadv = Stream(adv_k(3))
    qs = Stream([(1, lambda: A.wait_vm(["Q2"]))] + q_reads(1, BASES_B) + [(1, lambda: A.wait_ds(["Q"]))], QAT)
    E = epilogue_stream(S_QOFF, lambda: not qs.items)
    streams = [sadv, dmastream(dma_v(18), 11), qs, E]
    def chk(m):
        if m == 12: flush([sadv])
        if m == 24: flush([Stream(adv_v())])
    pv_group(F, T, ORD_D, streams, bar=(10, mkbar([("K", 16)])), kpre=16, hook=chk)
    flush([streams[1], qs])
    stamp()
    head_of_unit(1, F, E, dma_k(18) + dma_k(19))
    A.e("s_mov_b32 s%d, s%d" % (S_QOFF, S_QN))
    A.e("s_add_u32 s%d, s%d, 0x2000000" % (S_QN, S_QN))
    A.e("s_mov_b32 s%d, 1" % S_U)
    A.e("s_branch L_body")

def body():
    lds_entry = list(A.lds)
    A.label("L_body")
    phase2(0)
    gen_loop()
    for j in (13, 14):
        phase1(j); phase2(j)
    A.e("s_cmp_eq_u32 s%d, 1" % S_U)
    A.e("s_cbranch_scc1 L_last")
    vm, lds = list(A.vm), list(A.lds)
    tail_of_unit(False)
    assert A.lds == lds_entry[len(lds_entry) - len(A.lds):], (A.lds, lds_entry)
    A.label("L_last")
    A.vm, A.lds = vm, lds
    tail_of_unit(True)

hdr = open("standalone__gqa_softmax__near_ridge.s.ref").read().split("\n")
head = []
for l in hdr:
    if l.startswith("; @launch"):
        head.append("; @launch grid=(256,1,1) block=(256,1,1) lds=163840")
    elif l.startswith(";"):
        head.append(l)
    else:
        break

A.e("s_cmp_ge_u32 s2, 256")
A.e("s_cbranch_scc1 L_end")
A.e("s_load_dwordx4 s[4:7], s[0:1], 0")
A.e("s_load_dwordx4 s[36:39], s[0:1], 16")
if STAMPS:
    A.e("s_load_dwordx2 s[100:101], s[0:1], %d" % (32 if DBG else 40))
stamp()
if os.environ.get("SPLIT"):
    A.e("s_and_b32 s44, s2, 1")
    A.e("s_lshr_b32 s42, s2, 1")
else:
    A.e("s_and_b32 s42, s2, 7")
    A.e("s_lshr_b32 s43, s2, 3")
    A.e("s_and_b32 s44, s43, 1")
    A.e("s_lshr_b32 s43, s43, 1")
    A.e("s_lshl_b32 s42, s42, 4")
    A.e("s_add_u32 s42, s42, s43")
A.e("s_lshl_b32 s45, s42, 1")
A.e("s_add_u32 s45, s45, s44")
A.e("v_lshrrev_b32 v33, 6, v0")
A.e("v_and_b32 v32, 63, v0")
A.e("s_nop 0")
A.e("v_readfirstlane_b32 s%d, v33" % S_WAVE)
A.e("s_mov_b32 s%d, %s" % (S_C, f32hex(C_SCALE)))
A.e("s_nop 2")
A.e("s_lshl_b32 s%d, s%d, 12" % (S_LDSW, S_WAVE))
A.e("s_lshl_b32 s%d, s%d, 13" % (S_STG, S_WAVE))
A.e("s_add_u32 s%d, s%d, 0x%x" % (S_STG, S_STG, STG))
A.e("s_lshl_b32 s%d, s42, 18" % S_KOFF)
A.e("s_add_u32 s%d, s%d, s%d" % (S_KOFF, S_KOFF, S_LDSW))
A.e("s_mov_b32 s%d, s%d" % (S_VOFF, S_KOFF))
A.e("s_lshl_b32 s%d, s45, 17" % S_QOFF)
A.e("s_lshl_b32 s43, s%d, 15" % S_WAVE)
A.e("s_add_u32 s%d, s%d, s43" % (S_QOFF, S_QOFF))
A.e("s_add_u32 s%d, s%d, 0x2000000" % (S_QN, S_QOFF))
A.e("s_and_b32 s46, s%d, 1" % S_WAVE)
A.e("s_lshl_b32 s46, s46, 7")
A.e("s_xor_b32 s47, s46, 0x80")
A.e("v_and_b32 v33, 31, v32")
A.e("v_lshrrev_b32 v34, 5, v32")
A.e("v_lshlrev_b32 v35, 9, v33")
A.e("v_and_b32 v36, 15, v33")
A.e("v_xor_b32 v36, v36, v34")
for f in range(8):
    A.e("v_xor_b32 v37, %d, v36" % (2 * f))
    A.e("v_lshl_add_u32 v%d, v37, 4, v35" % (V_ADK + f))
A.e("s_and_b32 s43, s%d, 1" % S_WAVE)
A.e("s_lshl_b32 s43, s43, 3")
A.e("v_lshlrev_b32 v35, 9, v34")
A.e("v_xor_b32 v36, v33, v34")
A.e("v_xor_b32 v36, s43, v36")
for k in range(4):
    A.e("v_xor_b32 v37, %d, v36" % (2 * k))
    A.e("v_lshl_add_u32 v%d, v37, 4, v35" % (V_OFFK + k))
A.e("v_lshlrev_b32 v36, 2, v34")
A.e("v_xor_b32 v36, v33, v36")
for k2 in range(2):
    A.e("v_xor_b32 v37, %d, v36" % (8 * k2))
    A.e("v_lshl_add_u32 v%d, v37, 4, v35" % (V_OFFV + k2))
A.e("v_bfe_u32 v35, v32, 2, 2")
A.e("v_lshl_add_u32 v36, v34, 2, v35")
A.e("v_lshlrev_b32 v36, 9, v36")
A.e("v_add_u32 v36, 0x10000, v36")
A.e("v_bfe_u32 v37, v32, 4, 1")
A.e("v_lshl_add_u32 v36, v37, 5, v36")
A.e("v_and_b32 v37, 3, v32")
A.e("v_lshl_add_u32 v36, v37, 3, v36")
for f in range(4):
    A.e("v_xor_b32 v37, %d, v35" % f)
    A.e("v_lshl_add_u32 v%d, v37, 6, v36" % (V_ADV + f))
A.e("s_waitcnt lgkmcnt(0)")
for (d, p) in ((8, 4), (12, 6), (16, 36), (20, 38)):
    A.e("s_mov_b32 s%d, s%d" % (d, p))
    A.e("s_and_b32 s%d, s%d, 0xffff" % (d + 1, p + 1))
    A.e("s_mov_b32 s%d, 0x4000000" % (d + 2))
    A.e("s_mov_b32 s%d, 0x20000" % (d + 3))
A.e("s_mov_b32 s35, s46")
A.e("s_mov_b32 s36, s47")
for r in (S_KW, S_VW, S_KR, S_VR, S_U):
    A.e("s_mov_b32 s%d, 0" % r)
A.e("s_add_u32 s%d, s%d, 0x10000" % (S_LDSV, S_LDSW))
A.e("s_mov_b32 s%d, 0x4000000" % (S_SRD + 2))
A.e("s_mov_b32 s%d, 0x20000" % (S_SRD + 3))
A.e("s_mov_b32 s%d, s12" % S_SRD)
A.e("s_mov_b32 s%d, s13" % (S_SRD + 1))
STAG = int(os.environ.get("STAG", "0"))
A.e("s_lshr_b32 s43, s2, 4")
A.e("s_and_b32 s43, s43, 1")
def gwait(n):
    A.e("s_cmp_eq_u32 s43, 0")
    A.e("s_cbranch_scc1 L_gw%d" % n)
    A.e("s_waitcnt vmcnt(0)")
    A.label("L_gw%d" % n)
emit_seq(dma_k(0))
if STAG >= 2: gwait(0)
emit_seq(dma_q("Q1", S_QOFF, 0, 0, ('stg', 0)) + dma_q("Q1", S_QOFF, 0, 1, ('stg', 4096)))
if STAG >= 3: gwait(1)
emit_seq(dma_q("Q1", S_QOFF, 0, 2, ('slot', 32768)) + dma_q("Q1", S_QOFF, 0, 3, ('slot', 49152)))
if STAG >= 1: gwait(2)
for p in range(4):
    emit_seq(dma_q("Q2", S_QOFF, 1, p, ('slot', 65536 + p * 16384)))
    if STAG >= 3 and p == 1: gwait(3)
emit_seq(dma_k(1))
if os.environ.get("CPF"):
    A.e("s_getpc_b64 s[70:71]")
    A.e("s_lshr_b32 s72, s2, 3")
    A.e("s_and_b32 s72, s72, 31")
    A.e("s_lshl_b32 s72, s72, 2")
    A.e("s_add_u32 s72, s72, s%d" % S_WAVE)
    A.e("s_lshl_b32 s72, s72, 8")
    A.e("s_add_u32 s70, s70, s72")
    A.e("s_addc_u32 s71, s71, 0")
    for i in range(4):
        A.e("s_load_dwordx16 s[72:87], s[70:71], %d" % (64 * i))
A.wait_vm(["Q1"])
for c, f in q_reads(0, [(S_STG, 0), (S_STG, 4096), (S_LDSW, 32768), (S_LDSW, 49152)]): f()
A.wait_vm(["Q2"])
for c, f in q_reads(1, [(S_LDSW, 65536 + p * 16384) for p in range(4)]): f()
A.wait_ds(["Q"])
A.e("s_barrier")
stamp()
for s in range(4):
    kread(0, s)
F0 = Filler()
head_of_unit(0, F0, None, dma_v(0) + dma_k(2) + dma_v(1) + dma_k(3))
stamp()
body()
if STAMPS:
    stamp()
    A.e("s_waitcnt vmcnt(0)")
    stamp()
    n = nstamp[0]
    A.e("s_mov_b32 s8, s100")
    A.e("s_and_b32 s9, s101, 0xffff")
    if DBG:
        A.e("s_mov_b32 s10, 256")
        A.e("s_mov_b32 s11, 0x20000")
        A.e("s_cmp_lg_u32 s2, 77")
        A.e("s_cbranch_scc1 L_end")
        A.e("s_cmp_lg_u32 s%d, 0" % S_WAVE)
        A.e("s_cbranch_scc1 L_end")
        A.e("v_mov_b32 v1, 0")
        for i in range(1, n // 2):
            A.e("s_sub_u32 s32, s%d, s64" % (64 + 4 * i))
            A.e("v_mov_b32 v2, s32")
            A.e("buffer_store_dword v2, v1, s[8:11], 0 offen offset:%d" % (4 * (i - 1)))
            A.e("s_nop 1")
        A.e("s_sub_u32 s32, s%d, s66" % (66 + 4 * (n // 2 - 1)))
        A.e("v_mov_b32 v2, s32")
        A.e("buffer_store_dword v2, v1, s[8:11], 0 offen offset:%d" % (4 * (n // 2 - 1)))
    else:
        A.e("s_mov_b32 s10, 0x1000000")
        A.e("s_mov_b32 s11, 0x20000")
        A.e("s_lshl_b32 s32, s2, 2")
        A.e("s_add_u32 s32, s32, s%d" % S_WAVE)
        A.e("s_mul_i32 s32, s32, %d" % (n * 8))
        A.e("v_mov_b32 v1, 0")
        for i in range(n):
            A.e("v_mov_b32 v2, s%d" % (64 + 2 * i))
            A.e("v_mov_b32 v3, s%d" % (65 + 2 * i))
            A.e("buffer_store_dwordx2 v[2:3], v1, s[8:11], s32 offen offset:%d" % (8 * i))
            A.e("s_nop 1")
    print("nstamps", n)
A.label("L_end")
A.e("s_endpgm")
slow_block(0)
slow_block(1)

body = "\n".join(A.lines)
text = "\n".join(head) + """
.amdgcn_target "amdgcn-amd-amdhsa--gfx950"
.text
.globl %s
.p2align 8
.type %s,@function
%s:
%s
.section .rodata,"a"
.p2align 6
.amdhsa_kernel %s
  .amdhsa_next_free_vgpr 512
  .amdhsa_next_free_sgpr 102
  .amdhsa_accum_offset 256
  .amdhsa_group_segment_fixed_size 0
  .amdhsa_kernarg_size 48
  .amdhsa_user_sgpr_count 2
  .amdhsa_user_sgpr_kernarg_segment_ptr 1
  .amdhsa_system_sgpr_workgroup_id_x 1
.end_amdhsa_kernel
""" % (NAME, NAME, NAME, body, NAME)
open(OUT, "w").write(text)
print("wrote", OUT, len(A.lines), "lines", len(text), "bytes")
```
